```python
import torch

def _softmax(x, axis=-1):
    return torch.softmax(x, dim=axis)
def _gelu(x):
    return torch.nn.functional.gelu(x, approximate="tanh")
def _silu(x):
    return torch.nn.functional.silu(x)
def _sigmoid(x):
    return torch.sigmoid(x)
def _layernorm(x, axis=-1, eps=1e-5):
    m = x.mean(dim=axis, keepdim=True)
    v = x.var(dim=axis, keepdim=True, unbiased=False)
    return (x - m) / torch.sqrt(v + eps)
def _scatter_add(tgt, idx, src, axis=0):
    return tgt.clone().index_add_(axis, idx, src)
def _segment_sum(src, seg, n):
    out = torch.zeros((n,) + src.shape[1:], dtype=src.dtype)
    return out.index_add_(0, seg, src)
def _pad(x, pw):
    flat = tuple(v for pair in reversed(pw) for v in pair)
    return torch.nn.functional.pad(x, flat)

kernel_name = 'standalone__mha_block_cached__near_ridge'

def setup_inputs():

    _w = (lambda a: (lambda t: t.to(torch.bfloat16) if t.is_floating_point() else t)(torch.as_tensor(a)))
    B, Sq, D = 16, 112, 448
    H, Sk, Dh = 16, 512, 256
    return {
        "x": _w((lambda *s: torch.randn(*s, dtype=torch.bfloat16) * 0.8)(B, Sq, D)),
        "k_cache": _w((lambda *s: torch.randn(*s, dtype=torch.bfloat16) * 0.8)(B, H, Sk, Dh)),
        "v_cache": _w((lambda *s: torch.randn(*s, dtype=torch.bfloat16) * 0.05)(B, H, Sk, Dh)),
        "wq": _w((lambda *s: torch.randn(*s, dtype=torch.bfloat16) * 0.8)(D, H * Dh) * (D ** -0.5)),
        "wo": _w((lambda *s: torch.randn(*s, dtype=torch.bfloat16) * 0.05)(H * Dh, D) * ((H * Dh) ** -0.5)),
    }

def reference(x, k_cache, v_cache, wq, wo):
    B, Sq, D = x.shape
    H, Dh = 16, 256
    q = (lambda x, *d: x.permute(*d))((x @ wq).reshape(B, Sq, H, Dh), 0, 2, 1, 3)
    scores = torch.einsum("bhqd,bhkd->bhqk", q, k_cache) * (Dh ** -0.5)
    p = _softmax(scores, axis=-1)
    o = torch.einsum("bhqk,bhkd->bhqd", p, v_cache)
    return (lambda x, *d: x.permute(*d))(o, 0, 2, 1, 3).reshape(B, Sq, H * Dh) @ wo
```

```python
import re, sys, argparse

NAME = "standalone__mha_block_cached__near_ridge_kernel"

S_W, S_B, S_H, S_LDSW, S_T = 3, 4, 5, 6, 7
SRD_X, SRD_W, SRD_K, SRD_V, SRD_O, SRD_P, SRD_OUT, SRD_F = 8, 12, 16, 20, 24, 28, 32, 36
S_TOFF, S_C, S_T2, S_T3 = 44, 45, 46, 47
S_RET = 48
S_EX = 50
S_NONCE, S_CNT = 52, 53
S_PTR = 64
S_STAMP = 80

V_P = 0
V_S = [128, 144]
V_PT = 192
V_OA = [160, 128]
V_OPK = 192
V_XD, V_WD, V_KD, V_VD, V_OD = 208, 212, 216, 220, 224
V_XR, V_WR, V_KR, V_VR, V_OR = 228, 232, 236, 244, 246
V_L, V_NM, V_RI, V_LT, V_LT2, V_T0, V_T1, V_T2 = 248, 249, 250, 251, 252, 253, 254, 255

A_Q = 0
A_XB = 64
A_OUT = 0
A_RING = 224
NRING = 8

SLOT = 16384
NSLOT = 10

WS_PART = 0
PART_T = 28 * 1024
PART_H = 4 * PART_T
PART_B = 16 * PART_H
WS_FLAG = 64 * 1024 * 1024
WS_DBG = 96 * 1024 * 1024
WS_STAMP = 200 * 1024 * 1024


def vr(a, n=1):
    return f"v{a}" if n == 1 else f"v[{a}:{a+n-1}]"


def ar(a, n=1):
    return f"a{a}" if n == 1 else f"a[{a}:{a+n-1}]"


def sr(a, n=1):
    return f"s{a}" if n == 1 else f"s[{a}:{a+n-1}]"


class Tile:
    def __init__(self, kind, idx):
        self.kind, self.idx = kind, idx
        self.name = f"{kind}{idx}"
        self.slot = None
        self.first = None
        self.last = None
        self.issue = None

    def __repr__(self):
        return self.name


class Frag:
    def __init__(self, tile, reads, dst=None):
        self.tile, self.reads, self.dst = tile, reads, dst
        self.tag = None


class Gen:
    def __init__(self, opt):
        self.o = opt
        self.ins = []
        self.vm = []
        self.vm_done = -1
        self.lg = []
        self.lg_done = -1
        self.addr_slot = {}
        self.nstamp = 0

    def __call__(self, s):
        for l in s.split("\n"):
            l = l.strip()
            if l:
                self.ins.append(l)

    def vmem(self, s, tag):
        self(s)
        self.vm.append(tag)

    def lds(self, s, tag):
        self(s)
        self.lg.append(tag)

    def wait_vm(self, tags):
        idx = -1
        for i, t in enumerate(self.vm):
            if t in tags:
                idx = i
        if idx <= self.vm_done:
            return
        n = len(self.vm) - 1 - idx
        self(f"s_waitcnt vmcnt({min(n, 63)})")
        self.vm_done = idx if n <= 63 else max(self.vm_done, len(self.vm) - 1 - 63)
        assert self.vm_done >= idx

    def wait_vm_all(self):
        self("s_waitcnt vmcnt(0)")
        self.vm_done = len(self.vm) - 1

    def wait_lg(self, tags):
        idx = -1
        for i in range(len(self.lg) - 1, -1, -1):
            if self.lg[i] in tags:
                idx = i
                break
        if idx <= self.lg_done:
            return
        n = len(self.lg) - 1 - idx
        assert n <= 15, f"lgkmcnt overflow {n}"
        self(f"s_waitcnt lgkmcnt({n})")
        self.lg_done = idx

    def stamp(self):
        if self.o.stamps:
            k = S_STAMP + 2 * self.nstamp
            assert k + 1 <= 101
            self(f"s_memrealtime s[{k}:{k+1}]")
            self("s_waitcnt lgkmcnt(0)")
            self.lg_done = len(self.lg) - 1
            self.nstamp += 1

    def dma_instrs(self, T):
        k = T.kind
        pol = self.o.kvpol if k in "KV" else self.o.wpol
        if k == "X":
            soff, srd, va = 128 * T.idx, SRD_X, V_XD
        elif k == "W":
            soff, srd, va = T.idx * 32 * 8192, SRD_W, V_WD
        elif k == "K":
            soff, srd, va = T.idx * 16384, SRD_K, V_KD
        elif k == "V":
            c, u = T.idx // 4, T.idx % 4
            soff, srd, va = u * 65536 + c * 128, SRD_V, V_VD
        elif k == "O":
            c, kap = T.idx // 4, T.idx % 4
            soff, srd, va = (64 * c + 16 * kap) * 896, SRD_O, V_OD
        out = [(f"s_add_u32 m0, s{S_LDSW}, {T.slot * SLOT}\ns_mov_b32 s{S_TOFF}, {soff}", False)]
        for j in range(4):
            out.append((f"buffer_load_dwordx4 v{va + j}, s[{srd}:{srd+3}], s{S_TOFF} offen offset:{j*1024}{pol} lds", True))
        return out

    def emit_dma(self, T):
        for txt, isv in self.dma_instrs(T):
            if isv:
                self.vmem(txt, T.name)
            else:
                self(txt)

    def emit_frag(self, F, dst, isacc=True):
        for (mn, areg, imm, doff, dn) in F.reads:
            cur = self.addr_slot.get(areg, 0)
            if cur != F.tile.slot:
                d = ((F.tile.slot - cur) * SLOT) & 0xFFFFFFFF
                self(f"v_add_u32 v{areg}, 0x{d:x}, v{areg}")
                self.addr_slot[areg] = F.tile.slot
            self.lds(f"{mn} {ar(dst + doff, dn)}, v{areg} offset:{imm}", F.tag)

    def fragW(self, T, sp, dt):
        m, hi = dt & 3, dt >> 2
        return Frag(T, [("ds_read_b64_tr_b16", V_WR + m, (16 * sp + 4 * rho) * 512 + 256 * hi, 2 * rho, 2) for rho in range(2)])

    def fragX(self, T, sp):
        return Frag(T, [("ds_read_b128", V_XR + sp, 0, 0, 4)])

    def fragK(self, T, sig):
        return Frag(T, [("ds_read_b128", V_KR + (sig & 7), 256 * (sig >> 3), 0, 4)])

    def fragV(self, T, tau, dl):
        return Frag(T, [("ds_read_b64_tr_b16", V_VR + dl, tau * 2048 + rho * 1024, 2 * rho, 2) for rho in range(2)])

    def fragO(self, T, nt):
        return Frag(T, [("ds_read_b64_tr_b16", V_OR + (nt & 1), rho * 8 * 896 + 128 * (nt >> 1), 2 * rho, 2) for rho in range(2)])

    def prologue(self):
        A = self
        o = self.o
        A(f"s_cmp_ge_u32 s2, 256\ns_cbranch_scc1 L_end")
        self.stamp_first = True
        if o.stamps:
            A(f"s_memrealtime s[{S_STAMP}:{S_STAMP+1}]")
            self.nstamp = 1
        A(f"s_load_dwordx16 s[{S_PTR}:{S_PTR+15}], s[0:1], 0")
        if o.codetouch:
            A("s_getpc_b64 s[56:57]")
            A(f"s_lshr_b32 s{S_T}, s2, 3\ns_lshl_b32 s{S_T}, s{S_T}, 7")
            A(f"v_lshlrev_b32 v1, 12, v0\nv_add_u32 v1, s{S_T}, v1")
            A(f"v_cmp_gt_u32 vcc, CODE_TOUCH_N, v0\ns_and_saveexec_b64 s[{S_EX}:{S_EX+1}], vcc\ns_cbranch_execz L_notouch")
            A("global_load_dword v2, v1, s[56:57]")
            A(f"L_notouch:\ns_mov_b64 exec, s[{S_EX}:{S_EX+1}]")
        A(f"v_lshrrev_b32 v1, 6, v0")
        A(f"v_and_b32 v{V_T2}, 63, v0")
        A(f"v_readfirstlane_b32 s{S_W}, v1")
        A(f"""s_and_b32 s{S_T}, s2, 7
        s_lshr_b32 s{S_T2}, s2, 3
        s_lshr_b32 s{S_B}, s{S_T}, 2
        s_lshl_b32 s{S_B}, s{S_B}, 3
        s_lshr_b32 s{S_T3}, s{S_T2}, 2
        s_add_u32 s{S_B}, s{S_B}, s{S_T3}
        s_and_b32 s{S_H}, s{S_T}, 3
        s_lshl_b32 s{S_H}, s{S_H}, 2
        s_and_b32 s{S_T3}, s{S_T2}, 3
        s_add_u32 s{S_H}, s{S_H}, s{S_T3}
        s_lshl_b32 s{S_LDSW}, s{S_W}, 12""")
        L = V_T2
        A(f"""v_lshrrev_b32 v3, 3, v{L}
        v_and_b32 v4, 7, v{L}
        v_lshrrev_b32 v5, 4, v{L}
        v_lshrrev_b32 v6, 5, v{L}
        v_and_b32 v7, 31, v{L}""")
        A(f"s_lshl_b32 s{S_T}, s{S_W}, 5\nv_add_u32 v8, s{S_T}, v3")
        A("v_mul_u32_u24 v8, 896, v8")
        for j in range(4):
            A(f"v_add_u32 v9, {4*j}, v5\nv_and_b32 v9, 7, v9\nv_xor_b32 v9, v4, v9\nv_lshl_add_u32 v9, v9, 4, v8")
            A(f"v_add_u32 v{V_XD+j}, {j*(8*896-1024)}, v9")
        A(f"s_lshl_b32 s{S_T}, s{S_W}, 3\nv_add_u32 v8, s{S_T}, v6")
        A("v_lshlrev_b32 v10, 13, v8")
        for j in range(4):
            A(f"v_add_u32 v9, {2*j}, v6\nv_and_b32 v9, 3, v9\nv_lshlrev_b32 v9, 2, v9\nv_xor_b32 v9, v7, v9\nv_lshl_add_u32 v9, v9, 4, v10")
            A(f"v_add_u32 v{V_WD+j}, {j*(2*8192-1024)}, v9")
        A("v_lshlrev_b32 v10, 9, v8")
        for j in range(4):
            A(f"v_add_u32 v9, {2*j}, v8\nv_and_b32 v9, 15, v9\nv_xor_b32 v9, v7, v9\nv_lshl_add_u32 v{V_KD+j}, v9, 4, v10")
        A("s_waitcnt lgkmcnt(0)")
        P = S_PTR
        A(f"""s_mul_i32 s{S_T}, s{S_B}, 100352
        s_add_u32 s{SRD_X}, s{P}, s{S_T}
        s_addc_u32 s{SRD_X+1}, s{P+1}, 0
        s_mov_b32 s{SRD_X+2}, 100352
        s_mov_b32 s{SRD_X+3}, 0x20000
        s_lshl_b32 s{S_T}, s{S_H}, 9
        s_add_u32 s{SRD_W}, s{P+6}, s{S_T}
        s_addc_u32 s{SRD_W+1}, s{P+7}, 0
        s_sub_u32 s{SRD_W+2}, 3670016, s{S_T}
        s_mov_b32 s{SRD_W+3}, 0x20000
        s_lshl_b32 s{S_T}, s{S_B}, 4
        s_add_u32 s{S_T}, s{S_T}, s{S_H}
        s_lshl_b32 s{S_T}, s{S_T}, 18
        s_add_u32 s{SRD_K}, s{P+2}, s{S_T}
        s_addc_u32 s{SRD_K+1}, s{P+3}, 0
        s_mov_b32 s{SRD_K+2}, 262144
        s_mov_b32 s{SRD_K+3}, 0x20000
        s_add_u32 s{SRD_V}, s{P+4}, s{S_T}
        s_addc_u32 s{SRD_V+1}, s{P+5}, 0
        s_mov_b32 s{SRD_V+2}, 262144
        s_mov_b32 s{SRD_V+3}, 0x20000""")

    def prologue2(self):
        A = self
        P = S_PTR
        L = V_T2
        A(f"""s_mul_i32 s{S_T}, s{S_H}, 229376
        s_add_u32 s{SRD_O}, s{P+8}, s{S_T}
        s_addc_u32 s{SRD_O+1}, s{P+9}, 0
        s_mov_b32 s{SRD_O+2}, 229376
        s_mov_b32 s{SRD_O+3}, 0x20000
        s_mul_i32 s{S_T}, s{S_B}, {PART_B}
        s_add_u32 s{SRD_P}, s{P+14}, s{S_T}
        s_addc_u32 s{SRD_P+1}, s{P+15}, 0
        s_mov_b32 s{SRD_P+2}, {PART_B}
        s_mov_b32 s{SRD_P+3}, 0x20000
        s_mul_i32 s{S_T}, s{S_B}, 100352
        s_add_u32 s{SRD_OUT}, s{P+10}, s{S_T}
        s_addc_u32 s{SRD_OUT+1}, s{P+11}, 0
        s_mov_b32 s{SRD_OUT+2}, 100352
        s_mov_b32 s{SRD_OUT+3}, 0x20000
        s_lshl_b32 s{S_T}, s{S_B}, 11
        s_add_u32 s{S_T}, s{S_T}, {WS_FLAG}
        s_add_u32 s{SRD_F}, s{P+14}, s{S_T}
        s_addc_u32 s{SRD_F+1}, s{P+15}, 0
        s_mov_b32 s{SRD_F+2}, 2048
        s_mov_b32 s{SRD_F+3}, 0x20000
        s_mov_b32 s{S_C}, 0x3db8aa3b""")
        A(f"s_lshl_b32 s{S_T}, s{S_W}, 5\nv_add_u32 v8, s{S_T}, v3\nv_lshlrev_b32 v8, 9, v8")
        A("v_and_b32 v9, 1, v5\nv_lshlrev_b32 v9, 2, v9\nv_xor_b32 v9, v4, v9\nv_lshl_add_u32 v9, v9, 4, v8")
        for j in range(4):
            A(f"v_add_u32 v{V_VD+j}, {j*(8*512-1024)}, v9")
        A(f"s_lshl_b32 s{S_T}, s{S_W}, 8\nv_add_u32 v8, s{S_T}, v{L}")
        A(f"s_mov_b32 s{S_T2}, 1171")
        for j in range(4):
            A(f"""v_add_u32 v9, {64*j}, v8
            v_mul_u32_u24 v10, s{S_T2}, v9
            v_lshrrev_b32 v10, 16, v10
            v_mul_u32_u24 v11, 56, v10
            v_sub_u32 v11, v9, v11
            v_lshrrev_b32 v12, 1, v10
            v_and_b32 v12, 1, v12
            v_lshlrev_b32 v12, 2, v12
            v_xor_b32 v11, v11, v12
            v_mul_u32_u24 v10, 896, v10
            v_lshl_add_u32 v11, v11, 4, v10
            v_subrev_u32 v11, {1024*j}, v11
            v_cmp_gt_u32 vcc, 896, v9
            v_mov_b32 v12, 0x40000000
            v_cndmask_b32 v{V_OD+j}, v12, v11, vcc""")
        A(f"""v_and_b32 v8, 1, v5
        v_lshrrev_b32 v9, 2, v{L}
        v_and_b32 v9, 3, v9
        v_and_b32 v10, 3, v{L}
        v_and_b32 v11, 1, v10
        v_lshrrev_b32 v12, 1, v10""")
        A("""v_lshl_add_u32 v13, v6, 3, v9
        v_lshlrev_b32 v13, 9, v13
        v_lshl_add_u32 v14, v8, 1, v11
        v_lshl_add_u32 v13, v14, 4, v13
        v_lshl_add_u32 v13, v12, 3, v13""")
        for m in range(4):
            A(f"v_xor_b32 v14, {m}, v9\nv_lshl_add_u32 v{V_WR+m}, v14, 6, v13")
        A(f"s_lshl_b32 s{S_T}, s{S_W}, 5\nv_add_u32 v13, s{S_T}, v7\nv_lshrrev_b32 v14, 1, v13\nv_and_b32 v14, 7, v14\nv_lshlrev_b32 v13, 7, v13")
        for s in range(4):
            A(f"v_add_u32 v15, {2*s}, v6\nv_xor_b32 v15, v15, v14\nv_lshl_add_u32 v{V_XR+s}, v15, 4, v13")
        A("v_lshlrev_b32 v13, 9, v7\nv_and_b32 v14, 15, v7")
        for m in range(8):
            A(f"v_add_u32 v15, {2*m}, v6\nv_xor_b32 v15, v15, v14\nv_lshl_add_u32 v{V_KR+m}, v15, 4, v13")
        A("""v_lshl_add_u32 v13, v6, 2, v9
        v_lshrrev_b32 v14, 1, v9
        v_lshl_add_u32 v15, v8, 1, v12
        v_lshlrev_b32 v16, 7, v13
        v_lshl_add_u32 v16, v15, 4, v16
        v_lshl_add_u32 v16, v11, 3, v16""")
        for d in range(2):
            A(f"v_xor_b32 v17, {d}, v14\nv_lshl_add_u32 v{V_VR+d}, v17, 6, v16")
        A("""v_mul_u32_u24 v16, 896, v13
        v_lshl_add_u32 v15, v8, 1, v11
        v_lshl_add_u32 v16, v15, 4, v16
        v_lshl_add_u32 v16, v12, 3, v16""")
        for p in range(2):
            A(f"v_xor_b32 v17, {p}, v14\nv_lshl_add_u32 v{V_OR+p}, v17, 6, v16")
        A(f"s_cmp_lg_u32 s{S_H}, 0\ns_cbranch_scc1 L_nononce")
        A(f"s_cmp_lg_u32 s{S_W}, 0\ns_cbranch_scc1 L_nononce")
        A(f"""s_memrealtime s[56:57]
        s_waitcnt lgkmcnt(0)
        s_or_b32 s56, s56, 1
        v_mov_b32 v13, s56
        v_mov_b32 v14, s{S_B}
        v_lshlrev_b32 v14, 2, v14
        s_mov_b64 s[{S_EX}:{S_EX+1}], exec
        s_mov_b64 exec, 1
        global_store_dword v14, v13, s[{P+12}:{P+13}] sc1
        s_mov_b64 exec, s[{S_EX}:{S_EX+1}]
        L_nononce:""")

    def build(self):
        o = self.o
        X = [Tile("X", i) for i in range(7)]
        W = [Tile("W", i) for i in range(14)]
        K = [Tile("K", i) for i in range(16)]
        V = [Tile("V", i) for i in range(16)]
        O = [Tile("O", i) for i in range(16)]
        steps = []

        def M(D, C, Afr, B, Bfr=None, dn=16, dacc=False, bacc=False):
            return dict(D=D, C=C, A=Afr, B=B, Bfr=Bfr, dacc=dacc, bacc=bacc)

        xbuf = 0
        for t in range(14):
            mf = []
            for sp in range(2):
                s = 2 * t + sp
                Xt = X[s // 4]
                bf = self.fragX(Xt, s % 4)
                bf.dst = A_XB + 4 * (s & 3)
                order = range(8)
                for dt in order:
                    mf.append(M(V_P + 16 * dt, None if s == 0 else V_P + 16 * dt, self.fragW(W[t], sp, dt), bf.dst, Bfr=bf if dt == 0 else None, bacc=True))
            if t == 13:
                f0 = [m for m in mf[:8]]
                f1 = [m for m in mf[8:]]
                mf = []
                for dt in range(8):
                    mf += [f0[dt], f1[dt]]
                b0, b1 = f0[0]["Bfr"], f1[0]["Bfr"]
                mf[0]["Bfr"], mf[1]["Bfr"] = b0, b1
            steps.append(dict(name=f"W{t}", mf=mf, fill=[], tiles=[W[t], X[(2 * t) // 4]]))
        for t in range(16):
            S = V_S[t & 1]
            mf = [M(S, None if sig == 0 else S, self.fragK(K[t], sig), A_Q + 4 * sig, bacc=True) for sig in range(16)]
            steps.append(dict(name=f"K{t}", mf=mf, fill=[], tiles=[K[t]]))
        def vstep(c, u):
            OA = V_OA[c & 1]
            mf = []
            for tau in range(8):
                kt, beta = 4 * u + (tau >> 1), tau & 1
                for dl in range(2):
                    first = (u == 0 and tau == 0)
                    mf.append(M(OA + 16 * dl, None if first else OA + 16 * dl, self.fragV(V[4 * c + u], tau, dl), V_P + 8 * kt + 4 * beta))
            return dict(name=f"V{c}_{u}", mf=mf, fill=[], tiles=[V[4 * c + u]])

        def ostep(c, kap):
            mf = []
            for nt in range(14):
                first = (c == 0 and kap == 0)
                mf.append(M(A_OUT + 16 * nt, None if first else A_OUT + 16 * nt, self.fragO(O[4 * c + kap], nt), V_OPK + 4 * kap, dacc=True))
            return dict(name=f"O{c}_{kap}", mf=mf, fill=[], tiles=[O[4 * c + kap]])

        for u in range(4):
            steps.append(vstep(0, u))
        for c in range(1, 4):
            steps.append(vstep(c, 0))
            steps.append(ostep(c - 1, 0))
            steps.append(vstep(c, 1))
            steps.append(ostep(c - 1, 1))
            steps.append(vstep(c, 2))
            steps.append(ostep(c - 1, 2))
            steps.append(ostep(c - 1, 3))
            steps.append(vstep(c, 3))
        mf = []
        for nt in range(14):
            for kap in range(4):
                mf.append(M(A_OUT + 16 * nt, A_OUT + 16 * nt, self.fragO(O[12 + kap], nt), V_OPK + 4 * kap, dacc=True))
        steps.append(dict(name="O3", mf=mf, fill=[], tiles=[O[12], O[13], O[14], O[15]]))

        for si, st in enumerate(steps):
            st["idx"] = si
            for m in st["mf"]:
                for fr in (m["A"], m["Bfr"]):
                    if fr is not None:
                        T = fr.tile
                        T.first = si if T.first is None else T.first
                        T.last = si
        self.steps, self.X, self.W, self.K, self.V, self.O = steps, X, W, K, V, O
        return steps

    def plan_dma(self):
        X, W, K, V, O = self.X, self.W, self.K, self.V, self.O
        steps = self.steps
        nk0 = self.o.k0
        init = [X[0], W[0], W[1], K[0], W[2], X[1], W[3]] + K[1:nk0]
        init = init[:NSLOT]
        rest = []
        seen = set(t.name for t in init)
        for st in steps:
            for T in st["tiles"]:
                if T.name not in seen:
                    seen.add(T.name)
                    rest.append(T)
        free = []
        for i, T in enumerate(init):
            T.slot, T.issue = i, -1
        free = list(range(len(init), NSLOT))
        self.init_tiles = init
        allt = init + rest
        q = list(rest)
        for s, st in enumerate(steps):
            for T in allt:
                if T.slot is not None and T.last == s - 1:
                    free.append(T.slot)
            st["dma"] = []
            n = 0
            while q and free and n < self.o.dmarate:
                T = q.pop(0)
                T.slot = free.pop(0)
                T.issue = s
                st["dma"].append(T)
                n += 1
        assert not q
        for T in allt:
            need = max(T.first - 1, 0)
            assert T.issue < need or T.issue == -1, f"{T} issued at {T.issue} but needed at boundary {need}"
        if self.o.verbose:
            for T in allt:
                print(T.name, "slot", T.slot, "issue", T.issue, "first", T.first, "last", T.last, file=sys.stderr)

    def softmax_fill(self, t):
        S = V_S[t & 1]
        f = []
        if t == 0:
            f.append(f"v_max3_f32 v{V_T0}, v{S}, v{S+1}, v{S+2}")
            for i in range(3, 15, 2):
                f.append(f"v_max3_f32 v{V_T0}, v{V_T0}, v{S+i}, v{S+i+1}")
            f.append(f"v_max_f32 v{V_T0}, v{V_T0}, v{S+15}")
            f.append(f"v_mov_b32 v{V_T1}, v{V_T0}")
            f.append("s_nop 1")
            f.append(f"v_permlane32_swap_b32 v{V_T0}, v{V_T1}")
            f.append(f"v_max_f32 v{V_T0}, v{V_T0}, v{V_T1}")
            f.append(f"v_mul_f32 v{V_T0}, s{S_C}, v{V_T0}")
            f.append(f"v_ceil_f32 v{V_T0}, v{V_T0}")
            f.append(f"v_sub_f32 v{V_NM}, 0, v{V_T0}")
            f.append(f"v_mov_b32 v{V_L}, 0")
        for i in range(16):
            f.append(f"v_fma_f32 v{V_PT+i}, v{S+i}, s{S_C}, v{V_NM}")
        for i in range(16):
            f.append(f"v_exp_f32 v{V_PT+i}, v{V_PT+i}")
        f.append(f"v_add_f32 v{V_LT}, v{V_PT}, v{V_PT+1}")
        f.append(f"v_add_f32 v{V_LT2}, v{V_PT+2}, v{V_PT+3}")
        for i in range(4, 16, 2):
            f.append(f"v_add_f32 v{V_LT}, v{V_LT}, v{V_PT+i}")
            f.append(f"v_add_f32 v{V_LT2}, v{V_LT2}, v{V_PT+i+1}")
        f.append(f"v_add_f32 v{V_LT}, v{V_LT}, v{V_LT2}")
        if t > 0:
            f.append(f"v_cmp_ngt_f32 vcc, s{S_T3}, v{V_LT}")
            f.append(f"s_cbranch_vccnz L_rare{t}\nL_back{t}:")
            self.rare_sites.append(t)
        f.append(f"v_add_f32 v{V_L}, v{V_L}, v{V_LT}")
        for k in range(8):
            f.append(f"v_cvt_pk_bf16_f32 v{V_P + 8*t + k}, v{V_PT+2*k}, v{V_PT+2*k+1}")
        return f

    def rare_code(self):
        A = self
        for t in self.rare_sites:
            A(f"L_rare{t}:\ns_call_b64 s[{S_RET}:{S_RET+1}], L_rare_s{t&1}\ns_branch L_back{t}")
        for par in range(2):
            S = V_S[par]
            A(f"L_rare_s{par}:")
            A(f"v_max3_f32 v{V_T0}, v{S}, v{S+1}, v{S+2}")
            for i in range(3, 15, 2):
                A(f"v_max3_f32 v{V_T0}, v{V_T0}, v{S+i}, v{S+i+1}")
            A(f"v_max_f32 v{V_T0}, v{V_T0}, v{S+15}")
            A(f"v_mov_b32 v{V_T1}, v{V_T0}\ns_nop 1\nv_permlane32_swap_b32 v{V_T0}, v{V_T1}")
            A(f"v_max_f32 v{V_T0}, v{V_T0}, v{V_T1}")
            A(f"v_mul_f32 v{V_T0}, s{S_C}, v{V_T0}\nv_ceil_f32 v{V_T0}, v{V_T0}")
            A(f"v_max_f32 v{V_T0}, v{V_T0}, -v{V_NM}")
            A(f"v_add_f32 v{V_T1}, v{V_T0}, v{V_NM}")
            A(f"v_exp_f32 v{V_T1}, -v{V_T1}")
            A(f"v_sub_f32 v{V_NM}, 0, v{V_T0}")
            A(f"v_mul_f32 v{V_L}, v{V_L}, v{V_T1}")
            for r in range(128):
                A(f"v_lshlrev_b32 v{V_LT}, 16, v{V_P+r}\nv_and_b32 v{V_LT2}, 0xffff0000, v{V_P+r}")
                A(f"v_mul_f32 v{V_LT}, v{V_LT}, v{V_T1}\nv_mul_f32 v{V_LT2}, v{V_LT2}, v{V_T1}")
                A(f"v_cvt_pk_bf16_f32 v{V_P+r}, v{V_LT}, v{V_LT2}")
            for i in range(16):
                A(f"v_fma_f32 v{V_PT+i}, v{S+i}, s{S_C}, v{V_NM}")
            for i in range(16):
                A(f"v_exp_f32 v{V_PT+i}, v{V_PT+i}")
            A(f"s_nop 0\nv_add_f32 v{V_LT}, v{V_PT}, v{V_PT+1}")
            for i in range(2, 16):
                A(f"v_add_f32 v{V_LT}, v{V_LT}, v{V_PT+i}")
            A(f"s_setpc_b64 s[{S_RET}:{S_RET+1}]")

    def qcvt_fill(self, dt):
        f = []
        D = V_P + 16 * dt
        for k in range(8):
            f.append(f"v_cvt_pk_bf16_f32 v{V_PT + (k + 8*(dt&1))}, v{D+2*k}, v{D+2*k+1}")
        for k in range(8):
            f.append(f"v_accvgpr_write_b32 a{A_Q + 8*dt + k}, v{V_PT + (k + 8*(dt&1))}")
        return f

    def ofin_fill(self, c):
        OA = V_OA[c & 1]
        f = []
        for i in range(32):
            f.append(f"v_mul_f32 v{OA+i}, v{OA+i}, v{V_RI}")
        for k in range(16):
            f.append(f"v_cvt_pk_bf16_f32 v{V_OPK+k}, v{OA+2*k}, v{OA+2*k+1}")
        return f

    def lfin(self):
        return [f"v_mov_b32 v{V_T1}, v{V_L}", "s_nop 1", f"v_permlane32_swap_b32 v{V_L}, v{V_T1}", "s_nop 0",
                f"v_add_f32 v{V_L}, v{V_L}, v{V_T1}", f"v_rcp_f32 v{V_RI}, v{V_L}", "s_nop 0"]

    def emit_main(self):
        o = self.o
        steps = self.steps
        self.rare_sites = []
        mfs = []
        for st in steps:
            for k, m in enumerate(st["mf"]):
                m["step"], m["k"] = st["idx"], k
                mfs.append(m)
        rq = []
        ring = 0
        for gi, m in enumerate(mfs):
            m["gi"] = gi
            if m["Bfr"] is not None:
                fr = m["Bfr"]
                fr.tag = f"B{gi}"
                rq.append((gi, fr, fr.dst))
            fr = m["A"]
            fr.tag = f"A{gi}"
            fr.dst = A_RING + 4 * (ring % NRING)
            fr.ringidx = ring
            ring += 1
            rq.append((gi, fr, fr.dst))
        self.rqi = 0
        PF = o.pf

        def pump(cur_gi, cur_step):
            while self.rqi < len(rq):
                gi, fr, dst = rq[self.rqi]
                if gi > cur_gi + PF:
                    break
                if max(fr.tile.first - 1, 0) > cur_step:
                    break
                if fr.tag.startswith("B") and gi - cur_gi > (8 if mfs[gi]["step"] < 13 else 0) and False:
                    break
                self.emit_frag(fr, dst)
                self.rqi += 1

        name2step = {st["name"]: st for st in steps}
        for t in range(16):
            f = self.softmax_fill(t)
            if t < 15:
                name2step[f"K{t+1}"]["fill"] = ("late", 2, f)
            else:
                name2step["V0_0"]["fill"] = ("late", 2, f + self.lfin())
        for c in range(3):
            name2step[f"V{c+1}_0"]["fill"] = ("late", 3, self.ofin_fill(c))

        stop = o.stop
        for st in steps:
            s = st["idx"]
            need = [T.name for T in (self.X + self.W + self.K + self.V + self.O) if max(T.first - 1, 0) == s]
            if s == 0:
                need += [T.name for T in (self.X + self.W) if T.first == 0]
            if need:
                self.wait_vm(set(need))
            self("s_barrier")
            if o.stamps and st["name"] in o.stampat:
                self.stamp()
            cm = f"; ---- step {s} {st['name']} dma={st['dma']}"
            self.ins.append(cm)
            if stop and st["name"] == stop:
                return False
            if "pre" in st:
                self("s_nop 7\ns_nop 3")
                for l in st["pre"]:
                    self(l)
            if st["name"] == "O3":
                self("s_nop 7\ns_nop 3")
                for l in self.ofin_fill(3):
                    self(l)
                self("s_nop 1")
            fillq = []
            dmaq = []
            for T in st["dma"]:
                dmaq += [(txt, isv, T.name) for txt, isv in self.dma_instrs(T)]
            mode = st["fill"]
            fl_start, fl = (mode[1], list(mode[2])) if mode else (0, [])
            n = len(st["mf"])
            if s == 0:
                pump(st["mf"][0]["gi"] - 1, s)
            for k, m in enumerate(st["mf"]):
                gi = m["gi"]
                pump(gi, s) if k == 0 else None
                tags = {m["A"].tag}
                if m["Bfr"] is not None:
                    tags.add(m["Bfr"].tag)
                self.wait_lg(tags)
                D = ar(m["D"], 16) if m["dacc"] else vr(m["D"], 16)
                C = "0" if m["C"] is None else D
                B = ar(m["B"], 4) if m["bacc"] else vr(m["B"], 4)
                self(f"v_mfma_f32_32x32x16_bf16 {D}, {ar(m['A'].dst, 4)}, {B}, {C}")
                pump(gi + 1, s)
                if dmaq:
                    txt, isv, tag = dmaq.pop(0)
                    if not isv:
                        self(txt)
                        txt, isv, tag = dmaq.pop(0)
                    self.vmem(txt, tag)
                if fl and k >= fl_start:
                    gaps_left = n - k
                    cnt = -(-len(fl) // gaps_left)
                    for _ in range(cnt):
                        self(fl.pop(0))
                if st["name"] == "W13" and k >= 5 and k % 2 == 1:
                    dt = (k - 5) // 2
                    for l in self.qcvt_fill(dt):
                        self(l)
                if st["name"] == "O3" and k >= 7 and k % 4 == 3:
                    self.out_tile((k - 7) // 4)
            while dmaq:
                txt, isv, tag = dmaq.pop(0)
                if isv:
                    self.vmem(txt, tag)
                else:
                    self(txt)
            assert not fl
            if st["name"] == "W13":
                self("s_nop 7\ns_nop 3")
                for dt in range(6, 8):
                    for l in self.qcvt_fill(dt):
                        self(l)
                self("s_nop 1")
            if st["name"] == "O3":
                self("s_nop 7\ns_nop 3")
                self.out_tile(13)
        return True

    def out_tile(self, nt):
        base = 16 * (nt & 3)
        pk = 64 + 8 * (nt & 3)
        for i in range(16):
            self(f"v_accvgpr_read_b32 v{base+i}, a{A_OUT + 16*nt + i}")
        for k in range(8):
            self(f"v_cvt_pk_bf16_f32 v{pk+k}, v{base+2*k}, v{base+2*k+1}")
        for beta in range(2):
            g = 2 * nt + beta
            self(f"s_mov_b32 s{S_TOFF}, {g*1024}")
            self.vmem(f"buffer_store_dwordx4 v[{pk+4*beta}:{pk+4*beta+3}], v{V_XD}, s[{SRD_P}:{SRD_P+3}], s{S_TOFF} offen sc1", "PST")

    def tail_setup(self):
        A = self
        L = V_T2
        A(f"""s_mul_i32 s{S_T}, s{S_H}, {PART_H}
        s_mul_i32 s{S_T2}, s{S_W}, {PART_T}
        s_add_u32 s{S_T}, s{S_T}, s{S_T2}
        v_lshlrev_b32 v{V_XD}, 4, v{L}
        v_add_u32 v{V_XD}, s{S_T}, v{V_XD}
        v_and_b32 v{V_XD+1}, 31, v{L}
        s_lshl_b32 s{S_T2}, s{S_W}, 5
        v_add_u32 v{V_XD+1}, s{S_T2}, v{V_XD+1}
        v_cmp_gt_u32 vcc, 112, v{V_XD+1}
        v_mov_b32 v{V_XD+2}, 0x40000000
        v_cndmask_b32 v{V_XD}, v{V_XD+2}, v{V_XD}, vcc""")

    def tail(self):
        A = self
        L = V_T2
        P = S_PTR
        A("; ---- tail")
        A(f"s_waitcnt vmcnt(0)\ns_barrier")
        self.stamp()
        A(f"s_cmp_lg_u32 s{S_W}, 0\ns_cbranch_scc1 L_polled")
        A(f"""v_mov_b32 v1, s{S_B}
        v_lshlrev_b32 v1, 2, v1
        s_mov_b32 s{S_CNT}, 0
        L_nonce:
        global_load_dword v2, v1, s[{P+12}:{P+13}] sc1
        s_add_u32 s{S_CNT}, s{S_CNT}, 1
        s_waitcnt vmcnt(0)
        v_readfirstlane_b32 s{S_NONCE}, v2
        s_cmp_gt_u32 s{S_CNT}, 100000
        s_cbranch_scc1 L_givenup
        s_cmp_eq_u32 s{S_NONCE}, 0
        s_cbranch_scc1 L_nonce
        v_mov_b32 v3, s{S_NONCE}
        v_mov_b32 v4, s{S_H}
        v_lshlrev_b32 v4, 7, v4
        v_lshlrev_b32 v5, 7, v{L}
        s_mov_b64 s[{S_EX}:{S_EX+1}], exec
        s_mov_b64 exec, 1
        buffer_store_dword v3, v4, s[{SRD_F}:{SRD_F+3}], 0 offen sc1
        s_mov_b64 exec, 0xffff
        s_mov_b32 s{S_CNT}, 0
        L_poll:
        buffer_load_dword v6, v5, s[{SRD_F}:{SRD_F+3}], 0 offen sc1
        s_add_u32 s{S_CNT}, s{S_CNT}, 1
        s_waitcnt vmcnt(0)
        v_cmp_ne_u32 vcc, v6, v3
        s_cmp_gt_u32 s{S_CNT}, 100000
        s_cbranch_scc1 L_pdone
        s_cbranch_vccnz L_poll
        L_pdone:
        s_mov_b64 exec, s[{S_EX}:{S_EX+1}]
        L_givenup:
        L_polled:
        s_barrier""")
        self.stamp()
        A(f"""s_and_b32 s{S_T}, s{S_H}, 3
        s_lshr_b32 s{S_T2}, s{S_H}, 2
        s_mul_i32 s{S_T2}, s{S_T2}, 7
        s_add_u32 s{S_T2}, s{S_T2}, s{S_W}
        s_mul_i32 s{S_T3}, s{S_T}, {PART_T}
        s_lshl_b32 s54, s{S_T2}, 10
        s_add_u32 s54, s54, s{S_T3}
        v_lshlrev_b32 v1, 4, v{L}
        v_add_u32 v1, s54, v1
        v_and_b32 v2, 31, v{L}
        s_lshl_b32 s55, s{S_T}, 5
        v_add_u32 v2, s55, v2
        v_cmp_gt_u32 vcc, 112, v2
        v_mov_b32 v3, 0x40000000
        v_cndmask_b32 v1, v3, v1, vcc
        v_mul_u32_u24 v4, 896, v2
        v_lshrrev_b32 v5, 5, v{L}
        v_lshl_add_u32 v4, v5, 4, v4
        s_lshl_b32 s55, s{S_T2}, 5
        v_add_u32 v4, s55, v4
        v_cndmask_b32 v4, v3, v4, vcc
        s_mov_b32 s58, 0x00003f80
        s_mov_b32 s59, 0x3f800000""")
        for un in range(2):
            if un == 1:
                A(f"s_cmp_eq_u32 s{S_W}, 3\ns_cbranch_scc1 L_one_unit")
            for hh in range(16):
                A(f"s_mov_b32 s{S_TOFF}, {hh*PART_H + un*4096}")
                r = 16 + 64 * un + 4 * hh
                A(f"buffer_load_dwordx4 v[{r}:{r+3}], v1, s[{SRD_P}:{SRD_P+3}], s{S_TOFF} offen sc1")
        def reduce(un, nyounger):
            acc = 144 + 8 * un
            for hh in range(16):
                r = 16 + 64 * un + 4 * hh
                A(f"s_waitcnt vmcnt({nyounger + 15 - hh})")
                for k in range(4):
                    if hh == 0:
                        A(f"v_dot2_f32_bf16 v{acc+2*k}, v{r+k}, s58, 0")
                        A(f"v_dot2_f32_bf16 v{acc+2*k+1}, v{r+k}, s59, 0")
                    else:
                        A(f"v_dot2_f32_bf16 v{acc+2*k}, v{r+k}, s58, v{acc+2*k}")
                        A(f"v_dot2_f32_bf16 v{acc+2*k+1}, v{r+k}, s59, v{acc+2*k+1}")
            A("s_nop 2")
            for k in range(4):
                A(f"v_cvt_pk_bf16_f32 v{160+4*un+k}, v{acc+2*k}, v{acc+2*k+1}")
            A(f"buffer_store_dwordx4 v[{160+4*un}:{163+4*un}], v4, s[{SRD_OUT}:{SRD_OUT+3}], 0 offen offset:{128*un}")
        reduce(0, 16)
        reduce(1, 1)
        A("s_branch L_fin\nL_one_unit:")
        reduce(0, 0)
        A("L_fin:")

    def dump_regs(self, kind, start, n):
        A = self
        P = S_PTR
        A("s_waitcnt vmcnt(0) lgkmcnt(0)\ns_nop 7\ns_nop 7")
        A(f"""s_lshl_b32 s{S_T}, s2, 2
        s_add_u32 s{S_T}, s{S_T}, s{S_W}
        s_mul_i32 s{S_T}, s{S_T}, {n*256}
        s_add_u32 s{S_T}, s{S_T}, {WS_DBG}
        s_add_u32 s60, s{P+14}, s{S_T}
        s_addc_u32 s61, s{P+15}, 0
        s_mov_b32 s62, {n*256}
        s_mov_b32 s63, 0x20000
        v_lshlrev_b32 v{V_T0}, 2, v{V_T2}""")
        for i in range(n):
            A(f"s_mov_b32 s{S_TOFF}, {i*256}")
            if kind == "a":
                A(f"buffer_store_dword a{start+i}, v{V_T0}, s[60:63], s{S_TOFF} offen")
            else:
                A(f"buffer_store_dword v{start+i}, v{V_T0}, s[60:63], s{S_TOFF} offen")
        A("s_waitcnt vmcnt(0)")

    def write_stamps(self):
        if not self.o.stamps:
            return
        A = self
        P = S_PTR
        n = self.nstamp
        A(f"""s_waitcnt lgkmcnt(0)
        s_mul_i32 s{S_T}, s2, {8*self.o.nstamps}
        s_add_u32 s60, s{P+14}, s{S_T}
        s_addc_u32 s61, s{P+15}, 0
        s_add_u32 s60, s60, {WS_STAMP}
        s_addc_u32 s61, s61, 0
        s_cmp_lg_u32 s{S_W}, 0
        s_cbranch_scc1 L_nostamp
        s_mov_b64 exec, 1
        v_mov_b32 v1, 0""")
        assert n <= self.o.nstamps, n
        for i in range(self.o.nstamps):
            k = S_STAMP + 2 * min(i, n - 1)
            A(f"v_mov_b32 v2, s{k}\nv_mov_b32 v3, s{k+1}\nglobal_store_dwordx2 v1, v[2:3], s[60:61] offset:{8*i}\ns_nop 1")
        A("s_waitcnt vmcnt(0)\nL_nostamp:")

    def generate(self):
        o = self.o
        self.build()
        self.plan_dma()
        self.prologue()
        for T in self.init_tiles:
            if T.kind in "XWK":
                self.emit_dma(T)
        self.prologue2()
        self(f"s_mov_b32 s{S_T3}, 0x47800000")
        done = self.emit_main_wrap()
        if done:
            self.tail()
            if o.stamps:
                self("s_waitcnt vmcnt(0)")
                self.stamp()
        self.write_stamps()
        self("L_end:\ns_endpgm")
        self.rare_code()
        self("L_code_end:")
        return self.finish()

    def emit_main_wrap(self):
        o = self.o
        steps = self.steps
        for st in steps:
            if st["name"] == "K1":
                st["hook"] = True
        done = self._emit_with_hooks()
        if not done:
            kind, start, n = o.dump
            self.dump_regs(kind, start, n)
        return done

    def _emit_with_hooks(self):
        done = self.emit_main()
        if done:
            out = []
            save = self.ins
            self.ins = []
            self.tail_setup()
            setup = self.ins
            self.ins = save
            for l in self.ins:
                out.append(l)
                if l.startswith("; ---- step") and " K1 " in l:
                    out += setup
            self.ins = out
        return done

    def finish(self):
        ins = fix_hazards(self.ins, self.o.verbose)
        hdr = []
        hdr.append("; @launch grid=(256,1,1) block=(256,1,1) lds=163840")
        hdr.append('.amdgcn_target "amdgcn-amd-amdhsa--gfx950"')
        hdr.append(".text")
        hdr.append(f".globl {NAME}\n.p2align 8\n.type {NAME},@function\n{NAME}:")
        body = "\n".join(ins)
        nbytes = estimate_size(ins)
        ntouch = min(64, -(-(-(-nbytes // 128)) // 32))
        body = body.replace("CODE_TOUCH_N", str(ntouch))
        tail = f""".section .rodata,"a"
.p2align 6
.amdhsa_kernel {NAME}
  .amdhsa_next_free_vgpr 512
  .amdhsa_next_free_sgpr 102
  .amdhsa_accum_offset 256
  .amdhsa_group_segment_fixed_size 0
  .amdhsa_kernarg_size 64
  .amdhsa_user_sgpr_count 2
  .amdhsa_user_sgpr_kernarg_segment_ptr 1
  .amdhsa_system_sgpr_workgroup_id_x 1
.end_amdhsa_kernel"""
        if self.o.verbose:
            print("code bytes ~", nbytes, "touch lanes", ntouch, file=sys.stderr)
        return "\n".join(hdr) + "\n" + body + "\n" + tail + "\n"


REG_RE = re.compile(r"(-?)\b([vas])(?:\[(\d+):(\d+)\]|(\d+))(?![\w\[])")


def regs_of(op):
    out = []
    for m in REG_RE.finditer(op):
        k = m.group(2)
        if m.group(3) is not None:
            out += [(k, i) for i in range(int(m.group(3)), int(m.group(4)) + 1)]
        else:
            out.append((k, int(m.group(5))))
    return out


TRANS = ("v_exp_f32", "v_log_f32", "v_rcp_f32", "v_rsq_f32", "v_sqrt_f32")


def parse(l):
    l0 = l.split(";")[0].strip()
    if not l0 or l0.endswith(":") or l0.startswith("."):
        return None
    parts = l0.split(None, 1)
    mn = parts[0]
    ops = [x.strip() for x in parts[1].split(",")] if len(parts) > 1 else []
    d = dict(mn=mn, w=set(), r=set(), c=set(), kind="other")
    if mn.startswith("v_mfma"):
        d["kind"] = "mfma"
        d["w"] = set(regs_of(ops[0]))
        d["ab"] = set(regs_of(ops[1])) | set(regs_of(ops[2]))
        d["c"] = set(regs_of(ops[3]))
        d["r"] = d["ab"] | d["c"]
    elif mn.startswith("v_"):
        d["kind"] = "valu"
        if mn.startswith("v_cmp"):
            d["w"] = set(regs_of(ops[0])) | ({("s", "vcc")} if ops[0] == "vcc" else set())
            d["r"] = set(x for o in ops[1:] for x in regs_of(o))
        elif mn.startswith("v_permlane32_swap") or mn.startswith("v_permlane16_swap"):
            d["w"] = set(regs_of(ops[0])) | set(regs_of(ops[1]))
            d["r"] = set(d["w"])
            d["perm"] = True
        elif mn.startswith("v_readfirstlane") or mn.startswith("v_readlane"):
            d["w"] = set(regs_of(ops[0]))
            d["r"] = set(x for o in ops[1:] for x in regs_of(o))
            d["rfl"] = True
        else:
            d["w"] = set(regs_of(ops[0]))
            d["r"] = set(x for o in ops[1:] for x in regs_of(o))
            if "vcc" in ops[1:]:
                d["r"].add(("s", "vcc"))
            if mn.startswith("v_fmac") or mn.startswith("v_dot2c"):
                d["r"] |= d["w"]
        d["trans"] = mn.split("_e")[0] in TRANS or mn in TRANS
    elif mn.startswith("ds_read"):
        d["kind"] = "ds"
        d["w"] = set(regs_of(ops[0]))
        d["r"] = set(regs_of(ops[1].split()[0]))
    elif mn.startswith("ds_write"):
        d["kind"] = "ds"
        d["r"] = set(x for o in ops for x in regs_of(o.split()[0]))
    elif mn.startswith("buffer_") or mn.startswith("global_"):
        d["kind"] = "vmem"
        allr = [regs_of(o.split()[0]) if o else [] for o in ops]
        if "store" in mn or "atomic" in mn:
            d["r"] = set(x for a in allr for x in a)
            d["store"] = True
            big = "x4" in mn or "x3" in mn
            if big:
                src = allr[0] if mn.startswith("buffer_") else allr[1]
                d["stdata"] = set(src)
        elif " lds" in l0:
            d["r"] = set(x for a in allr for x in a)
            d["dma"] = True
        else:
            d["w"] = set(allr[0])
            d["r"] = set(x for a in allr[1:] for x in a)
    elif mn.startswith("s_"):
        d["kind"] = "salu"
        if mn == "s_nop":
            d["nop"] = int(ops[0]) + 1
        if ops and (ops[0] == "m0"):
            d["m0w"] = True
        if ops and not mn.startswith("s_cmp") and not mn.startswith("s_cbranch") and not mn.startswith("s_waitcnt"):
            d["w"] = set(regs_of(ops[0]))
        d["r"] = set(x for o in ops[1:] for x in regs_of(o))
    return d


def fix_hazards(ins, verbose=False):
    out = []
    last = {}
    pos = 0
    inserted = 0
    mf_w, mf_c, valu_w, trans_w, valu_sw, st_data = {}, {}, {}, {}, {}, {}
    m0w = -100
    for l in ins:
        d = parse(l)
        if d is None:
            out.append(l)
            continue
        need = 0

        def req(table, regs, n):
            nonlocal need
            for r in regs:
                if r in table:
                    need = max(need, table[r] + n + 1 - pos)
        k = d["kind"]
        if k == "mfma":
            req(valu_w, d["r"], 2)
            req(mf_w, d["ab"], 12)
            for r in d["c"]:
                if r in mf_w and d["c"] != mf_w_set.get(r, None):
                    need = max(need, mf_w[r] + 10 + 1 - pos)
        elif k == "valu":
            req(mf_w, d["r"] | d["w"], 12)
            req(mf_c, d["w"], 7)
            if not d.get("trans"):
                req(trans_w, d["r"], 1)
            else:
                req(trans_w, d["r"], 1)
            if d.get("perm"):
                req(valu_w, d["r"], 2)
            if d.get("rfl"):
                req(valu_w, d["r"], 1)
            req(valu_sw, set(r for r in d["r"] if r[0] == "s"), 2)
            req(st_data, d["w"], 2)
        elif k in ("ds", "vmem"):
            req(mf_w, d["r"] | d["w"], 12)
            req(valu_sw, set(r for r in d["r"] if r[0] == "s"), 5)
            req(trans_w, d["r"], 1)
            if d.get("dma"):
                need = max(need, m0w + 1 + 1 - pos)
        if need > 0:
            n = need
            while n > 0:
                c = min(n, 8)
                out.append(f"s_nop {c-1}")
                pos += c
                n -= c
            inserted += need
            if verbose:
                print(f"  hazard nop {need} before: {l}", file=sys.stderr)
        out.append(l)
        if k == "mfma":
            for r in d["w"]:
                mf_w[r] = pos
                mf_w_set[r] = d["w"]
            for r in d["c"]:
                mf_c[r] = pos
        elif k == "valu":
            for r in d["w"]:
                if r[0] == "s":
                    valu_sw[r] = pos
                else:
                    valu_w[r] = pos
                    if d.get("trans"):
                        trans_w[r] = pos
                    else:
                        trans_w.pop(r, None)
                    mf_w.pop(r, None)
        elif k == "vmem" and "stdata" in d:
            for r in d["stdata"]:
                st_data[r] = pos
        elif k == "salu":
            if d.get("m0w"):
                m0w = pos
            for r in d["w"]:
                valu_sw.pop(r, None)
        pos += d.get("nop", 1)
    if verbose:
        print("hazard nops inserted:", inserted, file=sys.stderr)
    return out


mf_w_set = {}


def estimate_size(ins):
    n = 0
    for l in ins:
        d = parse(l)
        if d is None:
            continue
        n += 8
    return n


def main():
    ap = argparse.ArgumentParser()
    ap.add_argument("-o", default="k.s")
    ap.add_argument("--kvpol", default=" nt")
    ap.add_argument("--wpol", default="")
    ap.add_argument("--pf", type=int, default=6)
    ap.add_argument("--k0", type=int, default=4)
    ap.add_argument("--dmarate", type=int, default=2)
    ap.add_argument("--stamps", action="store_true")
    ap.add_argument("--nstamps", type=int, default=10)
    ap.add_argument("--stampat", default="K0,V0_0,O3")
    ap.add_argument("--stop", default="")
    ap.add_argument("--dump", default="v,0,128")
    ap.add_argument("--nocodetouch", dest="codetouch", action="store_false")
    ap.add_argument("-v", dest="verbose", action="store_true")
    o = ap.parse_args()
    o.kvpol = o.kvpol.replace("_", " ")
    o.wpol = o.wpol.replace("_", " ")
    o.stampat = o.stampat.split(",")
    k, a, b = o.dump.split(",")
    o.dump = (k, int(a), int(b))
    g = Gen(o)
    open(o.o, "w").write(g.generate())


if __name__ == "__main__":
    main()
```

```python
import re, sys, argparse

NAME = "standalone__mha_block_cached__near_ridge_kernel"

S_W, S_B, S_H, S_LDSW, S_T = 3, 4, 5, 6, 7
SRD_X, SRD_W, SRD_K, SRD_V, SRD_O, SRD_P, SRD_OUT, SRD_F = 8, 12, 16, 20, 24, 28, 32, 36
S_TOFF, S_C, S_T2, S_T3 = 44, 45, 46, 47
S_RET = 48
S_EX = 50
S_NONCE, S_CNT = 52, 53
S_PTR = 64
S_STAMP = 80

V_P = 0
V_S = [128, 144]
V_PT = 192
V_OA = [160, 128]
V_OPK = 192
V_XD, V_WD, V_KD, V_VD, V_OD = 208, 212, 216, 220, 224
V_XR, V_WR, V_KR, V_VR, V_OR = 228, 232, 236, 244, 246
V_L, V_NM, V_RI, V_LT, V_LT2, V_T0, V_T1, V_T2 = 248, 249, 250, 251, 252, 253, 254, 255

A_Q = 0
A_XB = 64
A_OUT = 0
A_RING = 224
NRING = 8

SLOT = 16384
NSLOT = 10

WS_PART = 0
PART_T = 28 * 1024
PART_H = 4 * PART_T
PART_B = 16 * PART_H
WS_FLAG = 64 * 1024 * 1024
WS_DBG = 96 * 1024 * 1024
WS_STAMP = 200 * 1024 * 1024


def vr(a, n=1):
    return f"v{a}" if n == 1 else f"v[{a}:{a+n-1}]"


def ar(a, n=1):
    return f"a{a}" if n == 1 else f"a[{a}:{a+n-1}]"


def sr(a, n=1):
    return f"s{a}" if n == 1 else f"s[{a}:{a+n-1}]"


class Tile:
    def __init__(self, kind, idx):
        self.kind, self.idx = kind, idx
        self.name = f"{kind}{idx}"
        self.slot = None
        self.first = None
        self.last = None
        self.issue = None

    def __repr__(self):
        return self.name


class Frag:
    def __init__(self, tile, reads, dst=None):
        self.tile, self.reads, self.dst = tile, reads, dst
        self.tag = None


class Gen:
    def __init__(self, opt):
        self.o = opt
        self.ins = []
        self.vm = []
        self.vm_done = -1
        self.lg = []
        self.lg_done = -1
        self.addr_slot = {}
        self.nstamp = 0

    def __call__(self, s):
        for l in s.split("\n"):
            l = l.strip()
            if l:
                self.ins.append(l)

    def vmem(self, s, tag):
        self(s)
        self.vm.append(tag)

    def lds(self, s, tag):
        self(s)
        self.lg.append(tag)

    def wait_vm(self, tags):
        idx = -1
        for i, t in enumerate(self.vm):
            if t in tags:
                idx = i
        if idx <= self.vm_done:
            return
        n = len(self.vm) - 1 - idx
        self(f"s_waitcnt vmcnt({min(n, 63)})")
        self.vm_done = idx if n <= 63 else max(self.vm_done, len(self.vm) - 1 - 63)
        assert self.vm_done >= idx

    def wait_vm_all(self):
        self("s_waitcnt vmcnt(0)")
        self.vm_done = len(self.vm) - 1

    def wait_lg(self, tags):
        idx = -1
        for i in range(len(self.lg) - 1, -1, -1):
            if self.lg[i] in tags:
                idx = i
                break
        if idx <= self.lg_done:
            return
        n = len(self.lg) - 1 - idx
        assert n <= 15, f"lgkmcnt overflow {n}"
        self(f"s_waitcnt lgkmcnt({n})")
        self.lg_done = idx

    def stamp(self):
        if self.o.stamps:
            k = S_STAMP + 2 * self.nstamp
            assert k + 1 <= 101
            self(f"s_memrealtime s[{k}:{k+1}]")
            self("s_waitcnt lgkmcnt(0)")
            self.lg_done = len(self.lg) - 1
            self.nstamp += 1

    def dma_instrs(self, T):
        k = T.kind
        pol = self.o.kvpol if k in "KV" else self.o.wpol
        if k == "X":
            soff, srd, va = 128 * T.idx, SRD_X, V_XD
        elif k == "W":
            soff, srd, va = T.idx * 32 * 8192, SRD_W, V_WD
        elif k == "K":
            soff, srd, va = T.idx * 16384, SRD_K, V_KD
        elif k == "V":
            c, u = T.idx // 4, T.idx % 4
            soff, srd, va = u * 65536 + c * 128, SRD_V, V_VD
        elif k == "O":
            c, kap = T.idx // 4, T.idx % 4
            soff, srd, va = (64 * c + 16 * kap) * 896, SRD_O, V_OD
        out = [(f"s_add_u32 m0, s{S_LDSW}, {T.slot * SLOT}\ns_mov_b32 s{S_TOFF}, {soff}", False)]
        for j in range(4):
            out.append((f"buffer_load_dwordx4 v{va + j}, s[{srd}:{srd+3}], s{S_TOFF} offen offset:{j*1024}{pol} lds", True))
        return out

    def emit_dma(self, T):
        for txt, isv in self.dma_instrs(T):
            if isv:
                self.vmem(txt, T.name)
            else:
                self(txt)

    def emit_frag(self, F, dst, isacc=True):
        for (mn, areg, imm, doff, dn) in F.reads:
            cur = self.addr_slot.get(areg, 0)
            if cur != F.tile.slot:
                d = ((F.tile.slot - cur) * SLOT) & 0xFFFFFFFF
                self(f"v_add_u32 v{areg}, 0x{d:x}, v{areg}")
                self.addr_slot[areg] = F.tile.slot
            self.lds(f"{mn} {ar(dst + doff, dn)}, v{areg} offset:{imm}", F.tag)

    def fragW(self, T, sp, dt):
        m, hi = dt & 3, dt >> 2
        return Frag(T, [("ds_read_b64_tr_b16", V_WR + m, (16 * sp + 4 * rho) * 512 + 256 * hi, 2 * rho, 2) for rho in range(2)])

    def fragX(self, T, sp):
        return Frag(T, [("ds_read_b128", V_XR + sp, 0, 0, 4)])

    def fragK(self, T, sig):
        return Frag(T, [("ds_read_b128", V_KR + (sig & 7), 256 * (sig >> 3), 0, 4)])

    def fragV(self, T, tau, dl):
        return Frag(T, [("ds_read_b64_tr_b16", V_VR + dl, tau * 2048 + rho * 1024, 2 * rho, 2) for rho in range(2)])

    def fragO(self, T, nt):
        return Frag(T, [("ds_read_b64_tr_b16", V_OR + (nt & 1), rho * 8 * 896 + 128 * (nt >> 1), 2 * rho, 2) for rho in range(2)])

    def prologue(self):
        A = self
        o = self.o
        A(f"s_cmp_ge_u32 s2, 256\ns_cbranch_scc1 L_end")
        self.stamp_first = True
        if o.stamps:
            A(f"s_memrealtime s[{S_STAMP}:{S_STAMP+1}]")
            self.nstamp = 1
        A(f"s_load_dwordx16 s[{S_PTR}:{S_PTR+15}], s[0:1], 0")
        if o.codetouch:
            A("s_getpc_b64 s[56:57]")
            A(f"s_lshr_b32 s{S_T}, s2, 3\ns_lshl_b32 s{S_T}, s{S_T}, 7")
            A(f"v_lshlrev_b32 v1, 12, v0\nv_add_u32 v1, s{S_T}, v1")
            A(f"v_cmp_gt_u32 vcc, CODE_TOUCH_N, v0\ns_and_saveexec_b64 s[{S_EX}:{S_EX+1}], vcc\ns_cbranch_execz L_notouch")
            A("global_load_dword v2, v1, s[56:57]")
            A(f"L_notouch:\ns_mov_b64 exec, s[{S_EX}:{S_EX+1}]")
        A(f"v_lshrrev_b32 v1, 6, v0")
        A(f"v_and_b32 v{V_T2}, 63, v0")
        A(f"v_readfirstlane_b32 s{S_W}, v1")
        A(f"""s_and_b32 s{S_T}, s2, 7
        s_lshr_b32 s{S_T2}, s2, 3
        s_lshr_b32 s{S_B}, s{S_T}, 2
        s_lshl_b32 s{S_B}, s{S_B}, 3
        s_lshr_b32 s{S_T3}, s{S_T2}, 2
        s_add_u32 s{S_B}, s{S_B}, s{S_T3}
        s_and_b32 s{S_H}, s{S_T}, 3
        s_lshl_b32 s{S_H}, s{S_H}, 2
        s_and_b32 s{S_T3}, s{S_T2}, 3
        s_add_u32 s{S_H}, s{S_H}, s{S_T3}
        s_lshl_b32 s{S_LDSW}, s{S_W}, 12""")
        L = V_T2
        A(f"""v_lshrrev_b32 v3, 3, v{L}
        v_and_b32 v4, 7, v{L}
        v_lshrrev_b32 v5, 4, v{L}
        v_lshrrev_b32 v6, 5, v{L}
        v_and_b32 v7, 31, v{L}""")
        A(f"s_lshl_b32 s{S_T}, s{S_W}, 5\nv_add_u32 v8, s{S_T}, v3")
        A("v_mul_u32_u24 v8, 896, v8")
        for j in range(4):
            A(f"v_add_u32 v9, {4*j}, v5\nv_and_b32 v9, 7, v9\nv_xor_b32 v9, v4, v9\nv_lshl_add_u32 v9, v9, 4, v8")
            A(f"v_add_u32 v{V_XD+j}, {j*(8*896-1024)}, v9")
        A(f"s_lshl_b32 s{S_T}, s{S_W}, 3\nv_add_u32 v8, s{S_T}, v6")
        A("v_lshlrev_b32 v10, 13, v8")
        for j in range(4):
            A(f"v_add_u32 v9, {2*j}, v6\nv_and_b32 v9, 3, v9\nv_lshlrev_b32 v9, 2, v9\nv_xor_b32 v9, v7, v9\nv_lshl_add_u32 v9, v9, 4, v10")
            A(f"v_add_u32 v{V_WD+j}, {j*(2*8192-1024)}, v9")
        A("v_lshlrev_b32 v10, 9, v8")
        for j in range(4):
            A(f"v_add_u32 v9, {2*j}, v8\nv_and_b32 v9, 15, v9\nv_xor_b32 v9, v7, v9\nv_lshl_add_u32 v{V_KD+j}, v9, 4, v10")
        A("s_waitcnt lgkmcnt(0)")
        P = S_PTR
        A(f"""s_mul_i32 s{S_T}, s{S_B}, 100352
        s_add_u32 s{SRD_X}, s{P}, s{S_T}
        s_addc_u32 s{SRD_X+1}, s{P+1}, 0
        s_mov_b32 s{SRD_X+2}, 100352
        s_mov_b32 s{SRD_X+3}, 0x20000
        s_lshl_b32 s{S_T}, s{S_H}, 9
        s_add_u32 s{SRD_W}, s{P+6}, s{S_T}
        s_addc_u32 s{SRD_W+1}, s{P+7}, 0
        s_sub_u32 s{SRD_W+2}, 3670016, s{S_T}
        s_mov_b32 s{SRD_W+3}, 0x20000
        s_lshl_b32 s{S_T}, s{S_B}, 4
        s_add_u32 s{S_T}, s{S_T}, s{S_H}
        s_lshl_b32 s{S_T}, s{S_T}, 18
        s_add_u32 s{SRD_K}, s{P+2}, s{S_T}
        s_addc_u32 s{SRD_K+1}, s{P+3}, 0
        s_mov_b32 s{SRD_K+2}, 262144
        s_mov_b32 s{SRD_K+3}, 0x20000
        s_add_u32 s{SRD_V}, s{P+4}, s{S_T}
        s_addc_u32 s{SRD_V+1}, s{P+5}, 0
        s_mov_b32 s{SRD_V+2}, 262144
        s_mov_b32 s{SRD_V+3}, 0x20000""")

    def prologue2(self):
        A = self
        P = S_PTR
        L = V_T2
        A(f"""s_mul_i32 s{S_T}, s{S_H}, 229376
        s_add_u32 s{SRD_O}, s{P+8}, s{S_T}
        s_addc_u32 s{SRD_O+1}, s{P+9}, 0
        s_mov_b32 s{SRD_O+2}, 229376
        s_mov_b32 s{SRD_O+3}, 0x20000
        s_mul_i32 s{S_T}, s{S_B}, {PART_B}
        s_add_u32 s{SRD_P}, s{P+14}, s{S_T}
        s_addc_u32 s{SRD_P+1}, s{P+15}, 0
        s_mov_b32 s{SRD_P+2}, {PART_B}
        s_mov_b32 s{SRD_P+3}, 0x20000
        s_mul_i32 s{S_T}, s{S_B}, 100352
        s_add_u32 s{SRD_OUT}, s{P+10}, s{S_T}
        s_addc_u32 s{SRD_OUT+1}, s{P+11}, 0
        s_mov_b32 s{SRD_OUT+2}, 100352
        s_mov_b32 s{SRD_OUT+3}, 0x20000
        s_lshl_b32 s{S_T}, s{S_B}, 11
        s_add_u32 s{S_T}, s{S_T}, {WS_FLAG}
        s_add_u32 s{SRD_F}, s{P+14}, s{S_T}
        s_addc_u32 s{SRD_F+1}, s{P+15}, 0
        s_mov_b32 s{SRD_F+2}, 2048
        s_mov_b32 s{SRD_F+3}, 0x20000
        s_mov_b32 s{S_C}, 0x3db8aa3b""")
        A(f"s_lshl_b32 s{S_T}, s{S_W}, 5\nv_add_u32 v8, s{S_T}, v3\nv_lshlrev_b32 v8, 9, v8")
        A("v_and_b32 v9, 1, v5\nv_lshlrev_b32 v9, 2, v9\nv_xor_b32 v9, v4, v9\nv_lshl_add_u32 v9, v9, 4, v8")
        for j in range(4):
            A(f"v_add_u32 v{V_VD+j}, {j*(8*512-1024)}, v9")
        A(f"s_lshl_b32 s{S_T}, s{S_W}, 8\nv_add_u32 v8, s{S_T}, v{L}")
        A(f"s_mov_b32 s{S_T2}, 1171")
        for j in range(4):
            A(f"""v_add_u32 v9, {64*j}, v8
            v_mul_u32_u24 v10, s{S_T2}, v9
            v_lshrrev_b32 v10, 16, v10
            v_mul_u32_u24 v11, 56, v10
            v_sub_u32 v11, v9, v11
            v_lshrrev_b32 v12, 1, v10
            v_and_b32 v12, 1, v12
            v_lshlrev_b32 v12, 2, v12
            v_xor_b32 v11, v11, v12
            v_mul_u32_u24 v10, 896, v10
            v_lshl_add_u32 v11, v11, 4, v10
            v_subrev_u32 v11, {1024*j}, v11
            v_cmp_gt_u32 vcc, 896, v9
            v_mov_b32 v12, 0x40000000
            v_cndmask_b32 v{V_OD+j}, v12, v11, vcc""")
        A(f"""v_and_b32 v8, 1, v5
        v_lshrrev_b32 v9, 2, v{L}
        v_and_b32 v9, 3, v9
        v_and_b32 v10, 3, v{L}
        v_and_b32 v11, 1, v10
        v_lshrrev_b32 v12, 1, v10""")
        A("""v_lshl_add_u32 v13, v6, 3, v9
        v_lshlrev_b32 v13, 9, v13
        v_lshl_add_u32 v14, v8, 1, v11
        v_lshl_add_u32 v13, v14, 4, v13
        v_lshl_add_u32 v13, v12, 3, v13""")
        for m in range(4):
            A(f"v_xor_b32 v14, {m}, v9\nv_lshl_add_u32 v{V_WR+m}, v14, 6, v13")
        A(f"s_lshl_b32 s{S_T}, s{S_W}, 5\nv_add_u32 v13, s{S_T}, v7\nv_lshrrev_b32 v14, 1, v13\nv_and_b32 v14, 7, v14\nv_lshlrev_b32 v13, 7, v13")
        for s in range(4):
            A(f"v_add_u32 v15, {2*s}, v6\nv_xor_b32 v15, v15, v14\nv_lshl_add_u32 v{V_XR+s}, v15, 4, v13")
        A("v_lshlrev_b32 v13, 9, v7\nv_and_b32 v14, 15, v7")
        for m in range(8):
            A(f"v_add_u32 v15, {2*m}, v6\nv_xor_b32 v15, v15, v14\nv_lshl_add_u32 v{V_KR+m}, v15, 4, v13")
        A("""v_lshl_add_u32 v13, v6, 2, v9
        v_lshrrev_b32 v14, 1, v9
        v_lshl_add_u32 v15, v8, 1, v12
        v_lshlrev_b32 v16, 7, v13
        v_lshl_add_u32 v16, v15, 4, v16
        v_lshl_add_u32 v16, v11, 3, v16""")
        for d in range(2):
            A(f"v_xor_b32 v17, {d}, v14\nv_lshl_add_u32 v{V_VR+d}, v17, 6, v16")
        A("""v_mul_u32_u24 v16, 896, v13
        v_lshl_add_u32 v15, v8, 1, v11
        v_lshl_add_u32 v16, v15, 4, v16
        v_lshl_add_u32 v16, v12, 3, v16""")
        for p in range(2):
            A(f"v_xor_b32 v17, {p}, v14\nv_lshl_add_u32 v{V_OR+p}, v17, 6, v16")
        A(f"s_cmp_lg_u32 s{S_H}, 0\ns_cbranch_scc1 L_nononce")
        A(f"s_cmp_lg_u32 s{S_W}, 0\ns_cbranch_scc1 L_nononce")
        A(f"""s_memrealtime s[56:57]
        s_waitcnt lgkmcnt(0)
        s_or_b32 s56, s56, 1
        v_mov_b32 v13, s56
        v_mov_b32 v14, s{S_B}
        v_lshlrev_b32 v14, 2, v14
        v_add_u32 v14, 128, v14
        s_mov_b64 s[{S_EX}:{S_EX+1}], exec
        s_mov_b64 exec, 1
        global_store_dword v14, v13, s[{P+12}:{P+13}] sc1
        s_mov_b64 exec, s[{S_EX}:{S_EX+1}]
        L_nononce:""")

    def build(self):
        o = self.o
        X = [Tile("X", i) for i in range(7)]
        W = [Tile("W", i) for i in range(14)]
        K = [Tile("K", i) for i in range(16)]
        V = [Tile("V", i) for i in range(16)]
        O = [Tile("O", i) for i in range(16)]
        steps = []

        def M(D, C, Afr, B, Bfr=None, dn=16, dacc=False, bacc=False):
            return dict(D=D, C=C, A=Afr, B=B, Bfr=Bfr, dacc=dacc, bacc=bacc)

        xbuf = 0
        for t in range(14):
            mf = []
            for sp in range(2):
                s = 2 * t + sp
                Xt = X[s // 4]
                bf = self.fragX(Xt, s % 4)
                bf.dst = A_XB + 4 * (s & 3)
                order = range(8)
                for dt in order:
                    mf.append(M(V_P + 16 * dt, None if s == 0 else V_P + 16 * dt, self.fragW(W[t], sp, dt), bf.dst, Bfr=bf if dt == 0 else None, bacc=True))
            if t == 13:
                f0 = [m for m in mf[:8]]
                f1 = [m for m in mf[8:]]
                mf = []
                for dt in range(8):
                    mf += [f0[dt], f1[dt]]
                b0, b1 = f0[0]["Bfr"], f1[0]["Bfr"]
                mf[0]["Bfr"], mf[1]["Bfr"] = b0, b1
            steps.append(dict(name=f"W{t}", mf=mf, fill=[], tiles=[W[t], X[(2 * t) // 4]]))
        for t in range(16):
            S = V_S[t & 1]
            mf = [M(S, None if sig == 0 else S, self.fragK(K[t], sig), A_Q + 4 * sig, bacc=True) for sig in range(16)]
            steps.append(dict(name=f"K{t}", mf=mf, fill=[], tiles=[K[t]]))
        def vstep(c, u):
            OA = V_OA[c & 1]
            mf = []
            for tau in range(8):
                kt, beta = 4 * u + (tau >> 1), tau & 1
                for dl in range(2):
                    first = (u == 0 and tau == 0)
                    mf.append(M(OA + 16 * dl, None if first else OA + 16 * dl, self.fragV(V[4 * c + u], tau, dl), V_P + 8 * kt + 4 * beta))
            return dict(name=f"V{c}_{u}", mf=mf, fill=[], tiles=[V[4 * c + u]])

        def ostep(c, kap):
            mf = []
            for nt in range(14):
                first = (c == 0 and kap == 0)
                mf.append(M(A_OUT + 16 * nt, None if first else A_OUT + 16 * nt, self.fragO(O[4 * c + kap], nt), V_OPK + 4 * kap, dacc=True))
            return dict(name=f"O{c}_{kap}", mf=mf, fill=[], tiles=[O[4 * c + kap]])

        for u in range(4):
            steps.append(vstep(0, u))
        for c in range(1, 4):
            steps.append(vstep(c, 0))
            steps.append(ostep(c - 1, 0))
            steps.append(vstep(c, 1))
            steps.append(ostep(c - 1, 1))
            steps.append(vstep(c, 2))
            steps.append(ostep(c - 1, 2))
            steps.append(ostep(c - 1, 3))
            steps.append(vstep(c, 3))
        mf = []
        for nt in range(14):
            for kap in range(4):
                mf.append(M(A_OUT + 16 * nt, A_OUT + 16 * nt, self.fragO(O[12 + kap], nt), V_OPK + 4 * kap, dacc=True))
        steps.append(dict(name="O3", mf=mf, fill=[], tiles=[O[12], O[13], O[14], O[15]]))

        for si, st in enumerate(steps):
            st["idx"] = si
            for m in st["mf"]:
                for fr in (m["A"], m["Bfr"]):
                    if fr is not None:
                        T = fr.tile
                        T.first = si if T.first is None else T.first
                        T.last = si
        self.steps, self.X, self.W, self.K, self.V, self.O = steps, X, W, K, V, O
        return steps

    def plan_dma(self):
        X, W, K, V, O = self.X, self.W, self.K, self.V, self.O
        steps = self.steps
        nk0 = self.o.k0
        init = [X[0], W[0], W[1], K[0], W[2], X[1], W[3]] + K[1:nk0]
        init = init[:NSLOT]
        rest = []
        seen = set(t.name for t in init)
        for st in steps:
            for T in st["tiles"]:
                if T.name not in seen:
                    seen.add(T.name)
                    rest.append(T)
        free = []
        for i, T in enumerate(init):
            T.slot, T.issue = i, -1
        free = list(range(len(init), NSLOT))
        self.init_tiles = init
        allt = init + rest
        q = list(rest)
        for s, st in enumerate(steps):
            for T in allt:
                if T.slot is not None and T.last == s - 1:
                    free.append(T.slot)
            st["dma"] = []
            n = 0
            while q and free and n < self.o.dmarate:
                T = q.pop(0)
                T.slot = free.pop(0)
                T.issue = s
                st["dma"].append(T)
                n += 1
        assert not q
        for T in allt:
            need = max(T.first - 1, 0)
            assert T.issue < need or T.issue == -1, f"{T} issued at {T.issue} but needed at boundary {need}"
        if self.o.verbose:
            for T in allt:
                print(T.name, "slot", T.slot, "issue", T.issue, "first", T.first, "last", T.last, file=sys.stderr)

    def softmax_fill(self, t):
        S = V_S[t & 1]
        f = []
        if t == 0:
            f.append(f"v_max3_f32 v{V_T0}, v{S}, v{S+1}, v{S+2}")
            for i in range(3, 15, 2):
                f.append(f"v_max3_f32 v{V_T0}, v{V_T0}, v{S+i}, v{S+i+1}")
            f.append(f"v_max_f32 v{V_T0}, v{V_T0}, v{S+15}")
            f.append(f"v_mov_b32 v{V_T1}, v{V_T0}")
            f.append("s_nop 1")
            f.append(f"v_permlane32_swap_b32 v{V_T0}, v{V_T1}")
            f.append(f"v_max_f32 v{V_T0}, v{V_T0}, v{V_T1}")
            f.append(f"v_mul_f32 v{V_T0}, s{S_C}, v{V_T0}")
            f.append(f"v_ceil_f32 v{V_T0}, v{V_T0}")
            f.append(f"v_sub_f32 v{V_NM}, 0, v{V_T0}")
            f.append(f"v_mov_b32 v{V_L}, 0")
        for i in range(16):
            f.append(f"v_fma_f32 v{V_PT+i}, v{S+i}, s{S_C}, v{V_NM}")
        for i in range(16):
            f.append(f"v_exp_f32 v{V_PT+i}, v{V_PT+i}")
        f.append(f"v_add_f32 v{V_LT}, v{V_PT}, v{V_PT+1}")
        f.append(f"v_add_f32 v{V_LT2}, v{V_PT+2}, v{V_PT+3}")
        for i in range(4, 16, 2):
            f.append(f"v_add_f32 v{V_LT}, v{V_LT}, v{V_PT+i}")
            f.append(f"v_add_f32 v{V_LT2}, v{V_LT2}, v{V_PT+i+1}")
        f.append(f"v_add_f32 v{V_LT}, v{V_LT}, v{V_LT2}")
        if t > 0:
            f.append(f"v_cmp_ngt_f32 vcc, s{S_T3}, v{V_LT}")
            f.append(f"s_cbranch_vccnz L_rare{t}\nL_back{t}:")
            self.rare_sites.append(t)
        f.append(f"v_add_f32 v{V_L}, v{V_L}, v{V_LT}")
        for k in range(8):
            f.append(f"v_cvt_pk_bf16_f32 v{V_P + 8*t + k}, v{V_PT+2*k}, v{V_PT+2*k+1}")
        return f

    def rare_code(self):
        A = self
        for t in self.rare_sites:
            A(f"L_rare{t}:\ns_call_b64 s[{S_RET}:{S_RET+1}], L_rare_s{t&1}\ns_branch L_back{t}")
        for par in range(2):
            S = V_S[par]
            A(f"L_rare_s{par}:")
            A(f"v_max3_f32 v{V_T0}, v{S}, v{S+1}, v{S+2}")
            for i in range(3, 15, 2):
                A(f"v_max3_f32 v{V_T0}, v{V_T0}, v{S+i}, v{S+i+1}")
            A(f"v_max_f32 v{V_T0}, v{V_T0}, v{S+15}")
            A(f"v_mov_b32 v{V_T1}, v{V_T0}\ns_nop 1\nv_permlane32_swap_b32 v{V_T0}, v{V_T1}")
            A(f"v_max_f32 v{V_T0}, v{V_T0}, v{V_T1}")
            A(f"v_mul_f32 v{V_T0}, s{S_C}, v{V_T0}\nv_ceil_f32 v{V_T0}, v{V_T0}")
            A(f"v_max_f32 v{V_T0}, v{V_T0}, -v{V_NM}")
            A(f"v_add_f32 v{V_T1}, v{V_T0}, v{V_NM}")
            A(f"v_exp_f32 v{V_T1}, -v{V_T1}")
            A(f"v_sub_f32 v{V_NM}, 0, v{V_T0}")
            A(f"v_mul_f32 v{V_L}, v{V_L}, v{V_T1}")
            for r in range(128):
                A(f"v_lshlrev_b32 v{V_LT}, 16, v{V_P+r}\nv_and_b32 v{V_LT2}, 0xffff0000, v{V_P+r}")
                A(f"v_mul_f32 v{V_LT}, v{V_LT}, v{V_T1}\nv_mul_f32 v{V_LT2}, v{V_LT2}, v{V_T1}")
                A(f"v_cvt_pk_bf16_f32 v{V_P+r}, v{V_LT}, v{V_LT2}")
            for i in range(16):
                A(f"v_fma_f32 v{V_PT+i}, v{S+i}, s{S_C}, v{V_NM}")
            for i in range(16):
                A(f"v_exp_f32 v{V_PT+i}, v{V_PT+i}")
            A(f"s_nop 0\nv_add_f32 v{V_LT}, v{V_PT}, v{V_PT+1}")
            for i in range(2, 16):
                A(f"v_add_f32 v{V_LT}, v{V_LT}, v{V_PT+i}")
            A(f"s_setpc_b64 s[{S_RET}:{S_RET+1}]")

    def qcvt_fill(self, dt):
        f = []
        D = V_P + 16 * dt
        for k in range(8):
            f.append(f"v_cvt_pk_bf16_f32 v{V_PT + (k + 8*(dt&1))}, v{D+2*k}, v{D+2*k+1}")
        for k in range(8):
            f.append(f"v_accvgpr_write_b32 a{A_Q + 8*dt + k}, v{V_PT + (k + 8*(dt&1))}")
        return f

    def ofin_fill(self, c):
        OA = V_OA[c & 1]
        f = []
        for i in range(32):
            f.append(f"v_mul_f32 v{OA+i}, v{OA+i}, v{V_RI}")
        for k in range(16):
            f.append(f"v_cvt_pk_bf16_f32 v{V_OPK+k}, v{OA+2*k}, v{OA+2*k+1}")
        return f

    def lfin(self):
        return [f"v_mov_b32 v{V_T1}, v{V_L}", "s_nop 1", f"v_permlane32_swap_b32 v{V_L}, v{V_T1}", "s_nop 0",
                f"v_add_f32 v{V_L}, v{V_L}, v{V_T1}", f"v_rcp_f32 v{V_RI}, v{V_L}", "s_nop 0"]

    def emit_main(self):
        o = self.o
        steps = self.steps
        self.rare_sites = []
        mfs = []
        for st in steps:
            for k, m in enumerate(st["mf"]):
                m["step"], m["k"] = st["idx"], k
                mfs.append(m)
        rq = []
        ring = 0
        for gi, m in enumerate(mfs):
            m["gi"] = gi
            if m["Bfr"] is not None:
                fr = m["Bfr"]
                fr.tag = f"B{gi}"
                rq.append((gi, fr, fr.dst))
            fr = m["A"]
            fr.tag = f"A{gi}"
            fr.dst = A_RING + 4 * (ring % NRING)
            fr.ringidx = ring
            ring += 1
            rq.append((gi, fr, fr.dst))
        self.rqi = 0
        PF = o.pf

        def pump(cur_gi, cur_step):
            while self.rqi < len(rq):
                gi, fr, dst = rq[self.rqi]
                if gi > cur_gi + PF:
                    break
                if max(fr.tile.first - 1, 0) > cur_step:
                    break
                if fr.tag.startswith("B") and gi - cur_gi > (8 if mfs[gi]["step"] < 13 else 0) and False:
                    break
                self.emit_frag(fr, dst)
                self.rqi += 1

        name2step = {st["name"]: st for st in steps}
        for t in range(16):
            f = self.softmax_fill(t)
            if t < 15:
                name2step[f"K{t+1}"]["fill"] = ("late", 2, f)
            else:
                name2step["V0_0"]["fill"] = ("late", 2, f + self.lfin())
        for c in range(3):
            name2step[f"V{c+1}_0"]["fill"] = ("late", 3, self.ofin_fill(c))

        stop = o.stop
        for st in steps:
            s = st["idx"]
            need = [T.name for T in (self.X + self.W + self.K + self.V + self.O) if max(T.first - 1, 0) == s]
            if s == 0:
                need += [T.name for T in (self.X + self.W) if T.first == 0]
            if need:
                self.wait_vm(set(need))
            self("s_barrier")
            if o.stamps and st["name"] in o.stampat:
                self.stamp()
            cm = f"; ---- step {s} {st['name']} dma={st['dma']}"
            self.ins.append(cm)
            if stop and st["name"] == stop:
                return False
            if "pre" in st:
                self("s_nop 7\ns_nop 3")
                for l in st["pre"]:
                    self(l)
            if st["name"] == "O3":
                self("s_nop 7\ns_nop 3")
                for l in self.ofin_fill(3):
                    self(l)
                self("s_nop 1")
            fillq = []
            dmaq = []
            for T in st["dma"]:
                dmaq += [(txt, isv, T.name) for txt, isv in self.dma_instrs(T)]
            mode = st["fill"]
            fl_start, fl = (mode[1], list(mode[2])) if mode else (0, [])
            n = len(st["mf"])
            if s == 0:
                pump(st["mf"][0]["gi"] - 1, s)
            for k, m in enumerate(st["mf"]):
                gi = m["gi"]
                pump(gi, s) if k == 0 else None
                tags = {m["A"].tag}
                if m["Bfr"] is not None:
                    tags.add(m["Bfr"].tag)
                self.wait_lg(tags)
                D = ar(m["D"], 16) if m["dacc"] else vr(m["D"], 16)
                C = "0" if m["C"] is None else D
                B = ar(m["B"], 4) if m["bacc"] else vr(m["B"], 4)
                self(f"v_mfma_f32_32x32x16_bf16 {D}, {ar(m['A'].dst, 4)}, {B}, {C}")
                pump(gi + 1, s)
                if dmaq:
                    txt, isv, tag = dmaq.pop(0)
                    if not isv:
                        self(txt)
                        txt, isv, tag = dmaq.pop(0)
                    self.vmem(txt, tag)
                if fl and k >= fl_start:
                    gaps_left = n - k
                    cnt = -(-len(fl) // gaps_left)
                    for _ in range(cnt):
                        self(fl.pop(0))
                if st["name"] == "W13" and k >= 5 and k % 2 == 1:
                    dt = (k - 5) // 2
                    for l in self.qcvt_fill(dt):
                        self(l)
                if st["name"] == "O3" and k >= 7 and k % 4 == 3:
                    self.out_tile((k - 7) // 4)
            while dmaq:
                txt, isv, tag = dmaq.pop(0)
                if isv:
                    self.vmem(txt, tag)
                else:
                    self(txt)
            assert not fl
            if st["name"] == "W13":
                self("s_nop 7\ns_nop 3")
                for dt in range(6, 8):
                    for l in self.qcvt_fill(dt):
                        self(l)
                self("s_nop 1")
            if st["name"] == "O3":
                self("s_nop 7\ns_nop 3")
                self.out_tile(13)
        return True

    def out_tile(self, nt):
        base = 16 * (nt & 3)
        pk = 64 + 8 * (nt & 3)
        for i in range(16):
            self(f"v_accvgpr_read_b32 v{base+i}, a{A_OUT + 16*nt + i}")
        for k in range(8):
            self(f"v_cvt_pk_bf16_f32 v{pk+k}, v{base+2*k}, v{base+2*k+1}")
        for beta in range(2):
            g = 2 * nt + beta
            self(f"s_mov_b32 s{S_TOFF}, {g*1024}")
            self.vmem(f"buffer_store_dwordx4 v[{pk+4*beta}:{pk+4*beta+3}], v{V_XD}, s[{SRD_P}:{SRD_P+3}], s{S_TOFF} offen sc1", "PST")

    def tail_setup(self):
        A = self
        L = V_T2
        A(f"""s_mul_i32 s{S_T}, s{S_H}, {PART_H}
        s_mul_i32 s{S_T2}, s{S_W}, {PART_T}
        s_add_u32 s{S_T}, s{S_T}, s{S_T2}
        v_lshlrev_b32 v{V_XD}, 4, v{L}
        v_add_u32 v{V_XD}, s{S_T}, v{V_XD}
        v_and_b32 v{V_XD+1}, 31, v{L}
        s_lshl_b32 s{S_T2}, s{S_W}, 5
        v_add_u32 v{V_XD+1}, s{S_T2}, v{V_XD+1}
        v_cmp_gt_u32 vcc, 112, v{V_XD+1}
        v_mov_b32 v{V_XD+2}, 0x40000000
        v_cndmask_b32 v{V_XD}, v{V_XD+2}, v{V_XD}, vcc""")

    def tail(self):
        A = self
        L = V_T2
        P = S_PTR
        A("; ---- tail")
        A(f"s_waitcnt vmcnt(0)\ns_barrier")
        self.stamp()
        A(f"s_cmp_lg_u32 s{S_W}, 0\ns_cbranch_scc1 L_polled")
        A(f"""v_mov_b32 v1, s{S_B}
        v_lshlrev_b32 v1, 2, v1
        v_add_u32 v1, 128, v1
        s_mov_b32 s{S_CNT}, 0
        L_nonce:
        global_load_dword v2, v1, s[{P+12}:{P+13}] sc1
        s_add_u32 s{S_CNT}, s{S_CNT}, 1
        s_waitcnt vmcnt(0)
        v_readfirstlane_b32 s{S_NONCE}, v2
        s_cmp_gt_u32 s{S_CNT}, 100000
        s_cbranch_scc1 L_givenup
        s_cmp_eq_u32 s{S_NONCE}, 0
        s_cbranch_scc1 L_nonce
        v_mov_b32 v3, s{S_NONCE}
        v_mov_b32 v4, s{S_H}
        v_lshlrev_b32 v4, 7, v4
        v_lshlrev_b32 v5, 7, v{L}
        s_mov_b64 s[{S_EX}:{S_EX+1}], exec
        s_mov_b64 exec, 1
        buffer_store_dword v3, v4, s[{SRD_F}:{SRD_F+3}], 0 offen sc1
        s_mov_b64 exec, 0xffff
        s_mov_b32 s{S_CNT}, 0
        L_poll:
        buffer_load_dword v6, v5, s[{SRD_F}:{SRD_F+3}], 0 offen sc1
        s_add_u32 s{S_CNT}, s{S_CNT}, 1
        s_waitcnt vmcnt(0)
        v_cmp_ne_u32 vcc, v6, v3
        s_cmp_gt_u32 s{S_CNT}, 100000
        s_cbranch_scc1 L_pdone
        s_cbranch_vccnz L_poll
        L_pdone:
        s_mov_b64 exec, s[{S_EX}:{S_EX+1}]
        L_givenup:
        L_polled:
        s_barrier""")
        self.stamp()
        A(f"""s_and_b32 s{S_T}, s{S_H}, 3
        s_lshr_b32 s{S_T2}, s{S_H}, 2
        s_mul_i32 s{S_T2}, s{S_T2}, 7
        s_add_u32 s{S_T2}, s{S_T2}, s{S_W}
        s_mul_i32 s{S_T3}, s{S_T}, {PART_T}
        s_lshl_b32 s54, s{S_T2}, 10
        s_add_u32 s54, s54, s{S_T3}
        v_lshlrev_b32 v1, 4, v{L}
        v_add_u32 v1, s54, v1
        v_and_b32 v2, 31, v{L}
        s_lshl_b32 s55, s{S_T}, 5
        v_add_u32 v2, s55, v2
        v_cmp_gt_u32 vcc, 112, v2
        v_mov_b32 v3, 0x40000000
        v_cndmask_b32 v1, v3, v1, vcc
        v_mul_u32_u24 v4, 896, v2
        v_lshrrev_b32 v5, 5, v{L}
        v_lshl_add_u32 v4, v5, 4, v4
        s_lshl_b32 s55, s{S_T2}, 5
        v_add_u32 v4, s55, v4
        v_cndmask_b32 v4, v3, v4, vcc
        s_mov_b32 s58, 0x00003f80
        s_mov_b32 s59, 0x3f800000""")
        for un in range(2):
            if un == 1:
                A(f"s_cmp_eq_u32 s{S_W}, 3\ns_cbranch_scc1 L_one_unit")
            for hh in range(16):
                A(f"s_mov_b32 s{S_TOFF}, {hh*PART_H + un*4096}")
                r = 16 + 64 * un + 4 * hh
                A(f"buffer_load_dwordx4 v[{r}:{r+3}], v1, s[{SRD_P}:{SRD_P+3}], s{S_TOFF} offen sc1")
        def reduce(un, nyounger):
            acc = 144 + 8 * un
            for hh in range(16):
                r = 16 + 64 * un + 4 * hh
                A(f"s_waitcnt vmcnt({nyounger + 15 - hh})")
                for k in range(4):
                    if hh == 0:
                        A(f"v_dot2_f32_bf16 v{acc+2*k}, v{r+k}, s58, 0")
                        A(f"v_dot2_f32_bf16 v{acc+2*k+1}, v{r+k}, s59, 0")
                    else:
                        A(f"v_dot2_f32_bf16 v{acc+2*k}, v{r+k}, s58, v{acc+2*k}")
                        A(f"v_dot2_f32_bf16 v{acc+2*k+1}, v{r+k}, s59, v{acc+2*k+1}")
            A("s_nop 2")
            for k in range(4):
                A(f"v_cvt_pk_bf16_f32 v{160+4*un+k}, v{acc+2*k}, v{acc+2*k+1}")
            A(f"buffer_store_dwordx4 v[{160+4*un}:{163+4*un}], v4, s[{SRD_OUT}:{SRD_OUT+3}], 0 offen offset:{128*un}")
        reduce(0, 16)
        reduce(1, 1)
        A("s_branch L_fin\nL_one_unit:")
        reduce(0, 0)
        A("L_fin:")

    def dump_regs(self, kind, start, n):
        A = self
        P = S_PTR
        A("s_waitcnt vmcnt(0) lgkmcnt(0)\ns_nop 7\ns_nop 7")
        A(f"""s_lshl_b32 s{S_T}, s2, 2
        s_add_u32 s{S_T}, s{S_T}, s{S_W}
        s_mul_i32 s{S_T}, s{S_T}, {n*256}
        s_add_u32 s{S_T}, s{S_T}, {WS_DBG}
        s_add_u32 s60, s{P+14}, s{S_T}
        s_addc_u32 s61, s{P+15}, 0
        s_mov_b32 s62, {n*256}
        s_mov_b32 s63, 0x20000
        v_lshlrev_b32 v{V_T0}, 2, v{V_T2}""")
        for i in range(n):
            A(f"s_mov_b32 s{S_TOFF}, {i*256}")
            if kind == "a":
                A(f"buffer_store_dword a{start+i}, v{V_T0}, s[60:63], s{S_TOFF} offen")
            else:
                A(f"buffer_store_dword v{start+i}, v{V_T0}, s[60:63], s{S_TOFF} offen")
        A("s_waitcnt vmcnt(0)")

    def write_stamps(self):
        if not self.o.stamps:
            return
        A = self
        P = S_PTR
        n = self.nstamp
        A(f"""s_waitcnt lgkmcnt(0)
        s_mul_i32 s{S_T}, s2, {8*self.o.nstamps}
        s_add_u32 s60, s{P+14}, s{S_T}
        s_addc_u32 s61, s{P+15}, 0
        s_add_u32 s60, s60, {WS_STAMP}
        s_addc_u32 s61, s61, 0
        s_cmp_lg_u32 s{S_W}, 0
        s_cbranch_scc1 L_nostamp
        s_mov_b64 exec, 1
        v_mov_b32 v1, 0""")
        assert n <= self.o.nstamps, n
        if self.o.dbgstamps:
            k0, k1 = S_STAMP, S_STAMP + 2 * (n - 1)
            A(f"v_mov_b32 v2, s{k1}\nglobal_atomic_umax v1, v2, s[{P+12}:{P+13}]")
            A(f"s_not_b32 s{S_T}, s{k0}\nv_mov_b32 v2, s{S_T}\nglobal_atomic_umax v1, v2, s[{P+12}:{P+13}] offset:4")
            A(f"s_cmp_lg_u32 s2, {self.o.dbgwg}\ns_cbranch_scc1 L_nostamp")
            for i in range(1, n):
                k = S_STAMP + 2 * i
                A(f"s_sub_u32 s{S_T}, s{k}, s{k0}\nv_mov_b32 v2, s{S_T}\nglobal_store_dword v1, v2, s[{P+12}:{P+13}] offset:{4*(i+1)}\ns_nop 1")
            A("s_waitcnt vmcnt(0)\nL_nostamp:")
            return
        for i in range(self.o.nstamps):
            k = S_STAMP + 2 * min(i, n - 1)
            A(f"v_mov_b32 v2, s{k}\nv_mov_b32 v3, s{k+1}\nglobal_store_dwordx2 v1, v[2:3], s[60:61] offset:{8*i}\ns_nop 1")
        A("s_waitcnt vmcnt(0)\nL_nostamp:")

    def generate(self):
        o = self.o
        self.build()
        self.plan_dma()
        self.prologue()
        for T in self.init_tiles:
            if T.kind in "XWK":
                self.emit_dma(T)
        self.prologue2()
        self(f"s_mov_b32 s{S_T3}, 0x47800000")
        done = self.emit_main_wrap()
        if done:
            self.tail()
            if o.stamps:
                self("s_waitcnt vmcnt(0)")
                self.stamp()
        self.write_stamps()
        self("L_end:\ns_endpgm")
        self.rare_code()
        self("L_code_end:")
        return self.finish()

    def emit_main_wrap(self):
        o = self.o
        steps = self.steps
        for st in steps:
            if st["name"] == "K1":
                st["hook"] = True
        done = self._emit_with_hooks()
        if not done:
            kind, start, n = o.dump
            self.dump_regs(kind, start, n)
        return done

    def _emit_with_hooks(self):
        done = self.emit_main()
        if done:
            out = []
            save = self.ins
            self.ins = []
            self.tail_setup()
            setup = self.ins
            self.ins = save
            for l in self.ins:
                out.append(l)
                if l.startswith("; ---- step") and " K1 " in l:
                    out += setup
            self.ins = out
        return done

    def finish(self):
        ins = fix_hazards(self.ins, self.o.verbose)
        hdr = []
        hdr.append("; @launch grid=(256,1,1) block=(256,1,1) lds=163840")
        hdr.append('.amdgcn_target "amdgcn-amd-amdhsa--gfx950"')
        hdr.append(".text")
        hdr.append(f".globl {NAME}\n.p2align 8\n.type {NAME},@function\n{NAME}:")
        body = "\n".join(ins)
        nbytes = estimate_size(ins)
        ntouch = min(64, -(-(-(-nbytes // 128)) // 32))
        body = body.replace("CODE_TOUCH_N", str(ntouch))
        tail = f""".section .rodata,"a"
.p2align 6
.amdhsa_kernel {NAME}
  .amdhsa_next_free_vgpr 512
  .amdhsa_next_free_sgpr 102
  .amdhsa_accum_offset 256
  .amdhsa_group_segment_fixed_size 0
  .amdhsa_kernarg_size 64
  .amdhsa_user_sgpr_count 2
  .amdhsa_user_sgpr_kernarg_segment_ptr 1
  .amdhsa_system_sgpr_workgroup_id_x 1
.end_amdhsa_kernel"""
        if self.o.verbose:
            print("code bytes ~", nbytes, "touch lanes", ntouch, file=sys.stderr)
        return "\n".join(hdr) + "\n" + body + "\n" + tail + "\n"


REG_RE = re.compile(r"(-?)\b([vas])(?:\[(\d+):(\d+)\]|(\d+))(?![\w\[])")


def regs_of(op):
    out = []
    for m in REG_RE.finditer(op):
        k = m.group(2)
        if m.group(3) is not None:
            out += [(k, i) for i in range(int(m.group(3)), int(m.group(4)) + 1)]
        else:
            out.append((k, int(m.group(5))))
    return out


TRANS = ("v_exp_f32", "v_log_f32", "v_rcp_f32", "v_rsq_f32", "v_sqrt_f32")


def parse(l):
    l0 = l.split(";")[0].strip()
    if not l0 or l0.endswith(":") or l0.startswith("."):
        return None
    parts = l0.split(None, 1)
    mn = parts[0]
    ops = [x.strip() for x in parts[1].split(",")] if len(parts) > 1 else []
    d = dict(mn=mn, w=set(), r=set(), c=set(), kind="other")
    if mn.startswith("v_mfma"):
        d["kind"] = "mfma"
        d["w"] = set(regs_of(ops[0]))
        d["ab"] = set(regs_of(ops[1])) | set(regs_of(ops[2]))
        d["c"] = set(regs_of(ops[3]))
        d["r"] = d["ab"] | d["c"]
    elif mn.startswith("v_"):
        d["kind"] = "valu"
        if mn.startswith("v_cmp"):
            d["w"] = set(regs_of(ops[0])) | ({("s", "vcc")} if ops[0] == "vcc" else set())
            d["r"] = set(x for o in ops[1:] for x in regs_of(o))
        elif mn.startswith("v_permlane32_swap") or mn.startswith("v_permlane16_swap"):
            d["w"] = set(regs_of(ops[0])) | set(regs_of(ops[1]))
            d["r"] = set(d["w"])
            d["perm"] = True
        elif mn.startswith("v_readfirstlane") or mn.startswith("v_readlane"):
            d["w"] = set(regs_of(ops[0]))
            d["r"] = set(x for o in ops[1:] for x in regs_of(o))
            d["rfl"] = True
        else:
            d["w"] = set(regs_of(ops[0]))
            d["r"] = set(x for o in ops[1:] for x in regs_of(o))
            if "vcc" in ops[1:]:
                d["r"].add(("s", "vcc"))
            if mn.startswith("v_fmac") or mn.startswith("v_dot2c"):
                d["r"] |= d["w"]
        d["trans"] = mn.split("_e")[0] in TRANS or mn in TRANS
    elif mn.startswith("ds_read"):
        d["kind"] = "ds"
        d["w"] = set(regs_of(ops[0]))
        d["r"] = set(regs_of(ops[1].split()[0]))
    elif mn.startswith("ds_write"):
        d["kind"] = "ds"
        d["r"] = set(x for o in ops for x in regs_of(o.split()[0]))
    elif mn.startswith("buffer_") or mn.startswith("global_"):
        d["kind"] = "vmem"
        allr = [regs_of(o.split()[0]) if o else [] for o in ops]
        if "store" in mn or "atomic" in mn:
            d["r"] = set(x for a in allr for x in a)
            d["store"] = True
            big = "x4" in mn or "x3" in mn
            if big:
                src = allr[0] if mn.startswith("buffer_") else allr[1]
                d["stdata"] = set(src)
        elif " lds" in l0:
            d["r"] = set(x for a in allr for x in a)
            d["dma"] = True
        else:
            d["w"] = set(allr[0])
            d["r"] = set(x for a in allr[1:] for x in a)
    elif mn.startswith("s_"):
        d["kind"] = "salu"
        if mn == "s_nop":
            d["nop"] = int(ops[0]) + 1
        if ops and (ops[0] == "m0"):
            d["m0w"] = True
        if ops and not mn.startswith("s_cmp") and not mn.startswith("s_cbranch") and not mn.startswith("s_waitcnt"):
            d["w"] = set(regs_of(ops[0]))
        d["r"] = set(x for o in ops[1:] for x in regs_of(o))
    return d


def fix_hazards(ins, verbose=False):
    out = []
    last = {}
    pos = 0
    inserted = 0
    mf_w, mf_c, valu_w, trans_w, valu_sw, st_data = {}, {}, {}, {}, {}, {}
    m0w = -100
    for l in ins:
        d = parse(l)
        if d is None:
            out.append(l)
            continue
        need = 0

        def req(table, regs, n):
            nonlocal need
            for r in regs:
                if r in table:
                    need = max(need, table[r] + n + 1 - pos)
        k = d["kind"]
        if k == "mfma":
            req(valu_w, d["r"], 2)
            req(mf_w, d["ab"], 12)
            for r in d["c"]:
                if r in mf_w and d["c"] != mf_w_set.get(r, None):
                    need = max(need, mf_w[r] + 10 + 1 - pos)
        elif k == "valu":
            req(mf_w, d["r"] | d["w"], 12)
            req(mf_c, d["w"], 7)
            if not d.get("trans"):
                req(trans_w, d["r"], 1)
            else:
                req(trans_w, d["r"], 1)
            if d.get("perm"):
                req(valu_w, d["r"], 2)
            if d.get("rfl"):
                req(valu_w, d["r"], 1)
            req(valu_sw, set(r for r in d["r"] if r[0] == "s"), 2)
            req(st_data, d["w"], 2)
        elif k in ("ds", "vmem"):
            req(mf_w, d["r"] | d["w"], 12)
            req(valu_sw, set(r for r in d["r"] if r[0] == "s"), 5)
            req(trans_w, d["r"], 1)
            if d.get("dma"):
                need = max(need, m0w + 1 + 1 - pos)
        if need > 0:
            n = need
            while n > 0:
                c = min(n, 8)
                out.append(f"s_nop {c-1}")
                pos += c
                n -= c
            inserted += need
            if verbose:
                print(f"  hazard nop {need} before: {l}", file=sys.stderr)
        out.append(l)
        if k == "mfma":
            for r in d["w"]:
                mf_w[r] = pos
                mf_w_set[r] = d["w"]
            for r in d["c"]:
                mf_c[r] = pos
        elif k == "valu":
            for r in d["w"]:
                if r[0] == "s":
                    valu_sw[r] = pos
                else:
                    valu_w[r] = pos
                    if d.get("trans"):
                        trans_w[r] = pos
                    else:
                        trans_w.pop(r, None)
                    mf_w.pop(r, None)
        elif k == "vmem" and "stdata" in d:
            for r in d["stdata"]:
                st_data[r] = pos
        elif k == "salu":
            if d.get("m0w"):
                m0w = pos
            for r in d["w"]:
                valu_sw.pop(r, None)
        pos += d.get("nop", 1)
    if verbose:
        print("hazard nops inserted:", inserted, file=sys.stderr)
    return out


mf_w_set = {}


def estimate_size(ins):
    n = 0
    for l in ins:
        d = parse(l)
        if d is None:
            continue
        n += 8
    return n


def main():
    ap = argparse.ArgumentParser()
    ap.add_argument("-o", default="k.s")
    ap.add_argument("--kvpol", default=" nt")
    ap.add_argument("--wpol", default="")
    ap.add_argument("--pf", type=int, default=6)
    ap.add_argument("--k0", type=int, default=4)
    ap.add_argument("--dmarate", type=int, default=2)
    ap.add_argument("--stamps", action="store_true")
    ap.add_argument("--nstamps", type=int, default=10)
    ap.add_argument("--stampat", default="K0,V0_0,O3")
    ap.add_argument("--dbgstamps", action="store_true")
    ap.add_argument("--dbgwg", type=int, default=0)
    ap.add_argument("--stop", default="")
    ap.add_argument("--dump", default="v,0,128")
    ap.add_argument("--nocodetouch", dest="codetouch", action="store_false")
    ap.add_argument("-v", dest="verbose", action="store_true")
    o = ap.parse_args()
    o.kvpol = o.kvpol.replace("_", " ")
    o.wpol = o.wpol.replace("_", " ")
    o.stampat = o.stampat.split(",")
    k, a, b = o.dump.split(",")
    o.dump = (k, int(a), int(b))
    g = Gen(o)
    open(o.o, "w").write(g.generate())


if __name__ == "__main__":
    main()
```

```python
import re, sys, argparse

NAME = "standalone__mha_block_cached__near_ridge_kernel"

S_W, S_B, S_H, S_LDSW, S_T = 3, 4, 5, 6, 7
SRD_X, SRD_W, SRD_K, SRD_V, SRD_O, SRD_P, SRD_OUT, SRD_F = 8, 12, 16, 20, 24, 28, 32, 36
S_TOFF, S_C, S_T2, S_T3 = 44, 45, 46, 47
S_RET = 48
S_EX = 50
S_NONCE, S_CNT = 52, 53
S_PTR = 64
S_STAMP = 80

V_P = 0
V_S = [128, 144]
V_PT = 192
V_OA = [160, 128]
V_OPK = 192
V_XD, V_WD, V_KD, V_VD, V_OD = 208, 212, 216, 220, 224
V_XR, V_WR, V_KR, V_VR, V_OR = 228, 232, 236, 244, 246
V_L, V_NM, V_RI, V_LT, V_LT2, V_T0, V_T1, V_T2 = 248, 249, 250, 251, 252, 253, 254, 255

A_Q = 0
A_XB = 64
A_OUT = 0
A_RING = 224
NRING = 8

SLOT = 16384
NSLOT = 10

WS_PART = 0
PART_T = 28 * 1024
PART_H = 4 * PART_T
PART_B = 16 * PART_H
WS_FLAG = 64 * 1024 * 1024
WS_DBG = 96 * 1024 * 1024
WS_STAMP = 200 * 1024 * 1024


def vr(a, n=1):
    return f"v{a}" if n == 1 else f"v[{a}:{a+n-1}]"


def ar(a, n=1):
    return f"a{a}" if n == 1 else f"a[{a}:{a+n-1}]"


def sr(a, n=1):
    return f"s{a}" if n == 1 else f"s[{a}:{a+n-1}]"


class Tile:
    def __init__(self, kind, idx):
        self.kind, self.idx = kind, idx
        self.name = f"{kind}{idx}"
        self.slot = None
        self.first = None
        self.last = None
        self.issue = None

    def __repr__(self):
        return self.name


class Frag:
    def __init__(self, tile, reads, dst=None):
        self.tile, self.reads, self.dst = tile, reads, dst
        self.tag = None


class Gen:
    def __init__(self, opt):
        self.o = opt
        self.ins = []
        self.vm = []
        self.vm_done = -1
        self.lg = []
        self.lg_done = -1
        self.addr_slot = {}
        self.nstamp = 0

    def __call__(self, s):
        for l in s.split("\n"):
            l = l.strip()
            if l:
                self.ins.append(l)

    def vmem(self, s, tag):
        self(s)
        self.vm.append(tag)

    def lds(self, s, tag):
        self(s)
        self.lg.append(tag)

    def wait_vm(self, tags):
        idx = -1
        for i, t in enumerate(self.vm):
            if t in tags:
                idx = i
        if idx <= self.vm_done:
            return
        n = len(self.vm) - 1 - idx
        self(f"s_waitcnt vmcnt({min(n, 63)})")
        self.vm_done = idx if n <= 63 else max(self.vm_done, len(self.vm) - 1 - 63)
        assert self.vm_done >= idx

    def wait_vm_all(self):
        self("s_waitcnt vmcnt(0)")
        self.vm_done = len(self.vm) - 1

    def wait_lg(self, tags):
        idx = -1
        for i in range(len(self.lg) - 1, -1, -1):
            if self.lg[i] in tags:
                idx = i
                break
        if idx <= self.lg_done:
            return
        n = len(self.lg) - 1 - idx
        assert n <= 15, f"lgkmcnt overflow {n}"
        self(f"s_waitcnt lgkmcnt({n})")
        self.lg_done = idx

    def stamp(self):
        if self.o.stamps:
            k = S_STAMP + 2 * self.nstamp
            assert k + 1 <= 101
            self(f"s_memrealtime s[{k}:{k+1}]")
            self("s_waitcnt lgkmcnt(0)")
            self.lg_done = len(self.lg) - 1
            self.nstamp += 1

    def dma_instrs(self, T):
        k = T.kind
        pol = self.o.kpol if k == "K" else (self.o.vpol if k == "V" else self.o.wpol)
        if k == "X":
            soff, srd, va = 128 * T.idx, SRD_X, V_XD
        elif k == "W":
            soff, srd, va = T.idx * 32 * 8192, SRD_W, V_WD
        elif k == "K":
            soff, srd, va = T.idx * 16384, SRD_K, V_KD
        elif k == "V":
            c, u = T.idx // 4, T.idx % 4
            soff, srd, va = u * 65536 + c * 128, SRD_V, V_VD
        elif k == "O":
            c, kap = T.idx // 4, T.idx % 4
            soff, srd, va = (64 * c + 16 * kap) * 896, SRD_O, V_OD
        out = [(f"s_add_u32 m0, s{S_LDSW}, {T.slot * SLOT}\ns_mov_b32 s{S_TOFF}, {soff}", False)]
        for j in range(4):
            out.append((f"buffer_load_dwordx4 v{va + j}, s[{srd}:{srd+3}], s{S_TOFF} offen offset:{j*1024}{pol} lds", True))
        return out

    def emit_dma(self, T):
        for txt, isv in self.dma_instrs(T):
            if isv:
                self.vmem(txt, T.name)
            else:
                self(txt)

    def emit_frag(self, F, dst, isacc=True):
        for (mn, areg, imm, doff, dn) in F.reads:
            cur = self.addr_slot.get(areg, 0)
            if cur != F.tile.slot:
                d = ((F.tile.slot - cur) * SLOT) & 0xFFFFFFFF
                self(f"v_add_u32 v{areg}, 0x{d:x}, v{areg}")
                self.addr_slot[areg] = F.tile.slot
            self.lds(f"{mn} {ar(dst + doff, dn)}, v{areg} offset:{imm}", F.tag)

    def fragW(self, T, sp, dt):
        m, hi = dt & 3, dt >> 2
        return Frag(T, [("ds_read_b64_tr_b16", V_WR + m, (16 * sp + 4 * rho) * 512 + 256 * hi, 2 * rho, 2) for rho in range(2)])

    def fragX(self, T, sp):
        return Frag(T, [("ds_read_b128", V_XR + sp, 0, 0, 4)])

    def fragK(self, T, sig):
        return Frag(T, [("ds_read_b128", V_KR + (sig & 7), 256 * (sig >> 3), 0, 4)])

    def fragV(self, T, tau, dl):
        return Frag(T, [("ds_read_b64_tr_b16", V_VR + dl, tau * 2048 + rho * 1024, 2 * rho, 2) for rho in range(2)])

    def fragO(self, T, nt):
        return Frag(T, [("ds_read_b64_tr_b16", V_OR + (nt & 1), rho * 8 * 896 + 128 * (nt >> 1), 2 * rho, 2) for rho in range(2)])

    def prologue(self):
        A = self
        o = self.o
        A(f"s_cmp_ge_u32 s2, 256\ns_cbranch_scc1 L_end")
        self.stamp_first = True
        if o.stamps:
            A(f"s_memrealtime s[{S_STAMP}:{S_STAMP+1}]")
            self.nstamp = 1
        A(f"s_load_dwordx16 s[{S_PTR}:{S_PTR+15}], s[0:1], 0")
        if o.codetouch:
            A("s_getpc_b64 s[56:57]")
            A(f"s_lshr_b32 s{S_T}, s2, 3\ns_lshl_b32 s{S_T}, s{S_T}, 7")
            A(f"v_lshlrev_b32 v1, 12, v0\nv_add_u32 v1, s{S_T}, v1")
            A(f"v_cmp_gt_u32 vcc, CODE_TOUCH_N, v0\ns_and_saveexec_b64 s[{S_EX}:{S_EX+1}], vcc\ns_cbranch_execz L_notouch")
            A("global_load_dword v2, v1, s[56:57]")
            A(f"L_notouch:\ns_mov_b64 exec, s[{S_EX}:{S_EX+1}]")
        A(f"v_lshrrev_b32 v1, 6, v0")
        A(f"v_and_b32 v{V_T2}, 63, v0")
        A(f"v_readfirstlane_b32 s{S_W}, v1")
        A(f"""s_and_b32 s{S_T}, s2, 7
        s_lshr_b32 s{S_T2}, s2, 3
        s_lshr_b32 s{S_B}, s{S_T}, 2
        s_lshl_b32 s{S_B}, s{S_B}, 3
        s_lshr_b32 s{S_T3}, s{S_T2}, 2
        s_add_u32 s{S_B}, s{S_B}, s{S_T3}
        s_and_b32 s{S_H}, s{S_T}, 3
        s_lshl_b32 s{S_H}, s{S_H}, 2
        s_and_b32 s{S_T3}, s{S_T2}, 3
        s_add_u32 s{S_H}, s{S_H}, s{S_T3}
        s_lshl_b32 s{S_LDSW}, s{S_W}, 12""")
        L = V_T2
        A(f"""v_lshrrev_b32 v3, 3, v{L}
        v_and_b32 v4, 7, v{L}
        v_lshrrev_b32 v5, 4, v{L}
        v_lshrrev_b32 v6, 5, v{L}
        v_and_b32 v7, 31, v{L}""")
        A(f"s_lshl_b32 s{S_T}, s{S_W}, 5\nv_add_u32 v8, s{S_T}, v3")
        A("v_mul_u32_u24 v8, 896, v8")
        for j in range(4):
            A(f"v_add_u32 v9, {4*j}, v5\nv_and_b32 v9, 7, v9\nv_xor_b32 v9, v4, v9\nv_lshl_add_u32 v9, v9, 4, v8")
            A(f"v_add_u32 v{V_XD+j}, {j*(8*896-1024)}, v9")
        A(f"s_lshl_b32 s{S_T}, s{S_W}, 3\nv_add_u32 v8, s{S_T}, v6")
        A("v_lshlrev_b32 v10, 13, v8")
        for j in range(4):
            A(f"v_add_u32 v9, {2*j}, v6\nv_and_b32 v9, 3, v9\nv_lshlrev_b32 v9, 2, v9\nv_xor_b32 v9, v7, v9\nv_lshl_add_u32 v9, v9, 4, v10")
            A(f"v_add_u32 v{V_WD+j}, {j*(2*8192-1024)}, v9")
        A("v_lshlrev_b32 v10, 9, v8")
        for j in range(4):
            A(f"v_add_u32 v9, {2*j}, v8\nv_and_b32 v9, 15, v9\nv_xor_b32 v9, v7, v9\nv_lshl_add_u32 v{V_KD+j}, v9, 4, v10")
        A("s_waitcnt lgkmcnt(0)")
        P = S_PTR
        A(f"""s_mul_i32 s{S_T}, s{S_B}, 100352
        s_add_u32 s{SRD_X}, s{P}, s{S_T}
        s_addc_u32 s{SRD_X+1}, s{P+1}, 0
        s_mov_b32 s{SRD_X+2}, 100352
        s_mov_b32 s{SRD_X+3}, 0x20000
        s_lshl_b32 s{S_T}, s{S_H}, 9
        s_add_u32 s{SRD_W}, s{P+6}, s{S_T}
        s_addc_u32 s{SRD_W+1}, s{P+7}, 0
        s_sub_u32 s{SRD_W+2}, 3670016, s{S_T}
        s_mov_b32 s{SRD_W+3}, 0x20000
        s_lshl_b32 s{S_T}, s{S_B}, 4
        s_add_u32 s{S_T}, s{S_T}, s{S_H}
        s_lshl_b32 s{S_T}, s{S_T}, 18
        s_add_u32 s{SRD_K}, s{P+2}, s{S_T}
        s_addc_u32 s{SRD_K+1}, s{P+3}, 0
        s_mov_b32 s{SRD_K+2}, 262144
        s_mov_b32 s{SRD_K+3}, 0x20000
        s_add_u32 s{SRD_V}, s{P+4}, s{S_T}
        s_addc_u32 s{SRD_V+1}, s{P+5}, 0
        s_mov_b32 s{SRD_V+2}, 262144
        s_mov_b32 s{SRD_V+3}, 0x20000""")

    def prologue2(self):
        A = self
        P = S_PTR
        L = V_T2
        A(f"""s_mul_i32 s{S_T}, s{S_H}, 229376
        s_add_u32 s{SRD_O}, s{P+8}, s{S_T}
        s_addc_u32 s{SRD_O+1}, s{P+9}, 0
        s_mov_b32 s{SRD_O+2}, 229376
        s_mov_b32 s{SRD_O+3}, 0x20000
        s_mul_i32 s{S_T}, s{S_B}, {PART_B}
        s_add_u32 s{SRD_P}, s{P+14}, s{S_T}
        s_addc_u32 s{SRD_P+1}, s{P+15}, 0
        s_mov_b32 s{SRD_P+2}, {PART_B}
        s_mov_b32 s{SRD_P+3}, 0x20000
        s_mul_i32 s{S_T}, s{S_B}, 100352
        s_add_u32 s{SRD_OUT}, s{P+10}, s{S_T}
        s_addc_u32 s{SRD_OUT+1}, s{P+11}, 0
        s_mov_b32 s{SRD_OUT+2}, 100352
        s_mov_b32 s{SRD_OUT+3}, 0x20000
        s_lshl_b32 s{S_T}, s{S_B}, 11
        s_add_u32 s{S_T}, s{S_T}, {WS_FLAG}
        s_add_u32 s{SRD_F}, s{P+14}, s{S_T}
        s_addc_u32 s{SRD_F+1}, s{P+15}, 0
        s_mov_b32 s{SRD_F+2}, 2048
        s_mov_b32 s{SRD_F+3}, 0x20000
        s_mov_b32 s{S_C}, 0x3db8aa3b""")
        A(f"s_lshl_b32 s{S_T}, s{S_W}, 5\nv_add_u32 v8, s{S_T}, v3\nv_lshlrev_b32 v8, 9, v8")
        A("v_and_b32 v9, 1, v5\nv_lshlrev_b32 v9, 2, v9\nv_xor_b32 v9, v4, v9\nv_lshl_add_u32 v9, v9, 4, v8")
        for j in range(4):
            A(f"v_add_u32 v{V_VD+j}, {j*(8*512-1024)}, v9")
        A(f"s_lshl_b32 s{S_T}, s{S_W}, 8\nv_add_u32 v8, s{S_T}, v{L}")
        A(f"s_mov_b32 s{S_T2}, 1171")
        for j in range(4):
            A(f"""v_add_u32 v9, {64*j}, v8
            v_mul_u32_u24 v10, s{S_T2}, v9
            v_lshrrev_b32 v10, 16, v10
            v_mul_u32_u24 v11, 56, v10
            v_sub_u32 v11, v9, v11
            v_lshrrev_b32 v12, 1, v10
            v_and_b32 v12, 1, v12
            v_lshlrev_b32 v12, 2, v12
            v_xor_b32 v11, v11, v12
            v_mul_u32_u24 v10, 896, v10
            v_lshl_add_u32 v11, v11, 4, v10
            v_subrev_u32 v11, {1024*j}, v11
            v_cmp_gt_u32 vcc, 896, v9
            v_mov_b32 v12, 0x40000000
            v_cndmask_b32 v{V_OD+j}, v12, v11, vcc""")
        A(f"""v_and_b32 v8, 1, v5
        v_lshrrev_b32 v9, 2, v{L}
        v_and_b32 v9, 3, v9
        v_and_b32 v10, 3, v{L}
        v_and_b32 v11, 1, v10
        v_lshrrev_b32 v12, 1, v10""")
        A("""v_lshl_add_u32 v13, v6, 3, v9
        v_lshlrev_b32 v13, 9, v13
        v_lshl_add_u32 v14, v8, 1, v11
        v_lshl_add_u32 v13, v14, 4, v13
        v_lshl_add_u32 v13, v12, 3, v13""")
        for m in range(4):
            A(f"v_xor_b32 v14, {m}, v9\nv_lshl_add_u32 v{V_WR+m}, v14, 6, v13")
        A(f"s_lshl_b32 s{S_T}, s{S_W}, 5\nv_add_u32 v13, s{S_T}, v7\nv_lshrrev_b32 v14, 1, v13\nv_and_b32 v14, 7, v14\nv_lshlrev_b32 v13, 7, v13")
        for s in range(4):
            A(f"v_add_u32 v15, {2*s}, v6\nv_xor_b32 v15, v15, v14\nv_lshl_add_u32 v{V_XR+s}, v15, 4, v13")
        A("v_lshlrev_b32 v13, 9, v7\nv_and_b32 v14, 15, v7")
        for m in range(8):
            A(f"v_add_u32 v15, {2*m}, v6\nv_xor_b32 v15, v15, v14\nv_lshl_add_u32 v{V_KR+m}, v15, 4, v13")
        A("""v_lshl_add_u32 v13, v6, 2, v9
        v_lshrrev_b32 v14, 1, v9
        v_lshl_add_u32 v15, v8, 1, v12
        v_lshlrev_b32 v16, 7, v13
        v_lshl_add_u32 v16, v15, 4, v16
        v_lshl_add_u32 v16, v11, 3, v16""")
        for d in range(2):
            A(f"v_xor_b32 v17, {d}, v14\nv_lshl_add_u32 v{V_VR+d}, v17, 6, v16")
        A("""v_mul_u32_u24 v16, 896, v13
        v_lshl_add_u32 v15, v8, 1, v11
        v_lshl_add_u32 v16, v15, 4, v16
        v_lshl_add_u32 v16, v12, 3, v16""")
        for p in range(2):
            A(f"v_xor_b32 v17, {p}, v14\nv_lshl_add_u32 v{V_OR+p}, v17, 6, v16")
        A(f"s_cmp_lg_u32 s{S_H}, 0\ns_cbranch_scc1 L_nononce")
        A(f"s_cmp_lg_u32 s{S_W}, 0\ns_cbranch_scc1 L_nononce")
        A(f"""s_memrealtime s[56:57]
        s_waitcnt lgkmcnt(0)
        s_or_b32 s56, s56, 1
        v_mov_b32 v13, s56
        v_mov_b32 v14, s{S_B}
        v_lshlrev_b32 v14, 2, v14
        v_add_u32 v14, 128, v14
        s_mov_b64 s[{S_EX}:{S_EX+1}], exec
        s_mov_b64 exec, 1
        global_store_dword v14, v13, s[{P+12}:{P+13}] sc1
        s_mov_b64 exec, s[{S_EX}:{S_EX+1}]
        L_nononce:""")

    def build(self):
        o = self.o
        X = [Tile("X", i) for i in range(7)]
        W = [Tile("W", i) for i in range(14)]
        K = [Tile("K", i) for i in range(16)]
        V = [Tile("V", i) for i in range(16)]
        O = [Tile("O", i) for i in range(16)]
        steps = []

        def M(D, C, Afr, B, Bfr=None, dn=16, dacc=False, bacc=False):
            return dict(D=D, C=C, A=Afr, B=B, Bfr=Bfr, dacc=dacc, bacc=bacc)

        xbuf = 0
        for t in range(14):
            mf = []
            for sp in range(2):
                s = 2 * t + sp
                Xt = X[s // 4]
                bf = self.fragX(Xt, s % 4)
                bf.dst = A_XB + 4 * (s & 3)
                order = range(8)
                for dt in order:
                    mf.append(M(V_P + 16 * dt, None if s == 0 else V_P + 16 * dt, self.fragW(W[t], sp, dt), bf.dst, Bfr=bf if dt == 0 else None, bacc=True))
            if t == 13:
                f0 = [m for m in mf[:8]]
                f1 = [m for m in mf[8:]]
                mf = []
                for dt in range(8):
                    mf += [f0[dt], f1[dt]]
                b0, b1 = f0[0]["Bfr"], f1[0]["Bfr"]
                mf[0]["Bfr"], mf[1]["Bfr"] = b0, b1
            steps.append(dict(name=f"W{t}", mf=mf, fill=[], tiles=[W[t], X[(2 * t) // 4]]))
        for t in range(16):
            S = V_S[t & 1]
            mf = [M(S, None if sig == 0 else S, self.fragK(K[t], sig), A_Q + 4 * sig, bacc=True) for sig in range(16)]
            steps.append(dict(name=f"K{t}", mf=mf, fill=[], tiles=[K[t]]))
        def vstep(c, u):
            OA = V_OA[c & 1]
            mf = []
            for tau in range(8):
                kt, beta = 4 * u + (tau >> 1), tau & 1
                for dl in range(2):
                    first = (u == 0 and tau == 0)
                    mf.append(M(OA + 16 * dl, None if first else OA + 16 * dl, self.fragV(V[4 * c + u], tau, dl), V_P + 8 * kt + 4 * beta))
            return dict(name=f"V{c}_{u}", mf=mf, fill=[], tiles=[V[4 * c + u]])

        def ostep(c, kap):
            mf = []
            for nt in range(14):
                first = (c == 0 and kap == 0)
                mf.append(M(A_OUT + 16 * nt, None if first else A_OUT + 16 * nt, self.fragO(O[4 * c + kap], nt), V_OPK + 4 * kap, dacc=True))
            return dict(name=f"O{c}_{kap}", mf=mf, fill=[], tiles=[O[4 * c + kap]])

        for u in range(4):
            steps.append(vstep(0, u))
        for c in range(1, 4):
            steps.append(vstep(c, 0))
            steps.append(ostep(c - 1, 0))
            steps.append(vstep(c, 1))
            steps.append(ostep(c - 1, 1))
            steps.append(vstep(c, 2))
            steps.append(ostep(c - 1, 2))
            steps.append(ostep(c - 1, 3))
            steps.append(vstep(c, 3))
        mf = []
        for nt in range(14):
            for kap in range(4):
                mf.append(M(A_OUT + 16 * nt, A_OUT + 16 * nt, self.fragO(O[12 + kap], nt), V_OPK + 4 * kap, dacc=True))
        steps.append(dict(name="O3", mf=mf, fill=[], tiles=[O[12], O[13], O[14], O[15]]))

        for si, st in enumerate(steps):
            st["idx"] = si
            for m in st["mf"]:
                for fr in (m["A"], m["Bfr"]):
                    if fr is not None:
                        T = fr.tile
                        T.first = si if T.first is None else T.first
                        T.last = si
        self.steps, self.X, self.W, self.K, self.V, self.O = steps, X, W, K, V, O
        return steps

    def plan_dma(self):
        X, W, K, V, O = self.X, self.W, self.K, self.V, self.O
        steps = self.steps
        nk0 = self.o.k0
        init = [X[0], W[0], W[1], K[0], W[2], X[1], W[3]] + K[1:nk0]
        init = init[:NSLOT]
        rest = []
        seen = set(t.name for t in init)
        for st in steps:
            for T in st["tiles"]:
                if T.name not in seen:
                    seen.add(T.name)
                    rest.append(T)
        free = []
        for i, T in enumerate(init):
            T.slot, T.issue = i, -1
        free = list(range(len(init), NSLOT))
        self.init_tiles = init
        allt = init + rest
        q = list(rest)
        for s, st in enumerate(steps):
            for T in allt:
                if T.slot is not None and T.last == s - 1:
                    free.append(T.slot)
            st["dma"] = []
            n = 0
            while q and free and n < self.o.dmarate:
                T = q.pop(0)
                T.slot = free.pop(0)
                T.issue = s
                st["dma"].append(T)
                n += 1
        assert not q
        for T in allt:
            need = max(T.first - 1, 0)
            assert T.issue < need or T.issue == -1, f"{T} issued at {T.issue} but needed at boundary {need}"
        if self.o.verbose:
            for T in allt:
                print(T.name, "slot", T.slot, "issue", T.issue, "first", T.first, "last", T.last, file=sys.stderr)

    def softmax_fill(self, t):
        S = V_S[t & 1]
        f = []
        if t == 0:
            f.append(f"v_max3_f32 v{V_T0}, v{S}, v{S+1}, v{S+2}")
            for i in range(3, 15, 2):
                f.append(f"v_max3_f32 v{V_T0}, v{V_T0}, v{S+i}, v{S+i+1}")
            f.append(f"v_max_f32 v{V_T0}, v{V_T0}, v{S+15}")
            f.append(f"v_mov_b32 v{V_T1}, v{V_T0}")
            f.append("s_nop 1")
            f.append(f"v_permlane32_swap_b32 v{V_T0}, v{V_T1}")
            f.append(f"v_max_f32 v{V_T0}, v{V_T0}, v{V_T1}")
            f.append(f"v_mul_f32 v{V_T0}, s{S_C}, v{V_T0}")
            f.append(f"v_ceil_f32 v{V_T0}, v{V_T0}")
            f.append(f"v_sub_f32 v{V_NM}, 0, v{V_T0}")
            f.append(f"v_mov_b32 v{V_L}, 0")
        for i in range(16):
            f.append(f"v_fma_f32 v{V_PT+i}, v{S+i}, s{S_C}, v{V_NM}")
        for i in range(16):
            f.append(f"v_exp_f32 v{V_PT+i}, v{V_PT+i}")
        f.append(f"v_add_f32 v{V_LT}, v{V_PT}, v{V_PT+1}")
        f.append(f"v_add_f32 v{V_LT2}, v{V_PT+2}, v{V_PT+3}")
        for i in range(4, 16, 2):
            f.append(f"v_add_f32 v{V_LT}, v{V_LT}, v{V_PT+i}")
            f.append(f"v_add_f32 v{V_LT2}, v{V_LT2}, v{V_PT+i+1}")
        f.append(f"v_add_f32 v{V_LT}, v{V_LT}, v{V_LT2}")
        if t > 0:
            f.append(f"v_cmp_ngt_f32 vcc, s{S_T3}, v{V_LT}")
            f.append(f"s_cbranch_vccnz L_rare{t}\nL_back{t}:")
            self.rare_sites.append(t)
        f.append(f"v_add_f32 v{V_L}, v{V_L}, v{V_LT}")
        for k in range(8):
            f.append(f"v_cvt_pk_bf16_f32 v{V_P + 8*t + k}, v{V_PT+2*k}, v{V_PT+2*k+1}")
        return f

    def rare_code(self):
        A = self
        for t in self.rare_sites:
            A(f"L_rare{t}:\ns_call_b64 s[{S_RET}:{S_RET+1}], L_rare_s{t&1}\ns_branch L_back{t}")
        for par in range(2):
            S = V_S[par]
            A(f"L_rare_s{par}:")
            A(f"v_max3_f32 v{V_T0}, v{S}, v{S+1}, v{S+2}")
            for i in range(3, 15, 2):
                A(f"v_max3_f32 v{V_T0}, v{V_T0}, v{S+i}, v{S+i+1}")
            A(f"v_max_f32 v{V_T0}, v{V_T0}, v{S+15}")
            A(f"v_mov_b32 v{V_T1}, v{V_T0}\ns_nop 1\nv_permlane32_swap_b32 v{V_T0}, v{V_T1}")
            A(f"v_max_f32 v{V_T0}, v{V_T0}, v{V_T1}")
            A(f"v_mul_f32 v{V_T0}, s{S_C}, v{V_T0}\nv_ceil_f32 v{V_T0}, v{V_T0}")
            A(f"v_max_f32 v{V_T0}, v{V_T0}, -v{V_NM}")
            A(f"v_add_f32 v{V_T1}, v{V_T0}, v{V_NM}")
            A(f"v_exp_f32 v{V_T1}, -v{V_T1}")
            A(f"v_sub_f32 v{V_NM}, 0, v{V_T0}")
            A(f"v_mul_f32 v{V_L}, v{V_L}, v{V_T1}")
            for r in range(128):
                A(f"v_lshlrev_b32 v{V_LT}, 16, v{V_P+r}\nv_and_b32 v{V_LT2}, 0xffff0000, v{V_P+r}")
                A(f"v_mul_f32 v{V_LT}, v{V_LT}, v{V_T1}\nv_mul_f32 v{V_LT2}, v{V_LT2}, v{V_T1}")
                A(f"v_cvt_pk_bf16_f32 v{V_P+r}, v{V_LT}, v{V_LT2}")
            for i in range(16):
                A(f"v_fma_f32 v{V_PT+i}, v{S+i}, s{S_C}, v{V_NM}")
            for i in range(16):
                A(f"v_exp_f32 v{V_PT+i}, v{V_PT+i}")
            A(f"s_nop 0\nv_add_f32 v{V_LT}, v{V_PT}, v{V_PT+1}")
            for i in range(2, 16):
                A(f"v_add_f32 v{V_LT}, v{V_LT}, v{V_PT+i}")
            A(f"s_setpc_b64 s[{S_RET}:{S_RET+1}]")

    def qcvt_fill(self, dt):
        f = []
        D = V_P + 16 * dt
        for k in range(8):
            f.append(f"v_cvt_pk_bf16_f32 v{V_PT + (k + 8*(dt&1))}, v{D+2*k}, v{D+2*k+1}")
        for k in range(8):
            f.append(f"v_accvgpr_write_b32 a{A_Q + 8*dt + k}, v{V_PT + (k + 8*(dt&1))}")
        return f

    def ofin_fill(self, c):
        OA = V_OA[c & 1]
        f = []
        for i in range(32):
            f.append(f"v_mul_f32 v{OA+i}, v{OA+i}, v{V_RI}")
        for k in range(16):
            f.append(f"v_cvt_pk_bf16_f32 v{V_OPK+k}, v{OA+2*k}, v{OA+2*k+1}")
        return f

    def lfin(self):
        return [f"v_mov_b32 v{V_T1}, v{V_L}", "s_nop 1", f"v_permlane32_swap_b32 v{V_L}, v{V_T1}", "s_nop 0",
                f"v_add_f32 v{V_L}, v{V_L}, v{V_T1}", f"v_rcp_f32 v{V_RI}, v{V_L}", "s_nop 0"]

    def emit_main(self):
        o = self.o
        steps = self.steps
        self.rare_sites = []
        mfs = []
        for st in steps:
            for k, m in enumerate(st["mf"]):
                m["step"], m["k"] = st["idx"], k
                mfs.append(m)
        rq = []
        ring = 0
        for gi, m in enumerate(mfs):
            m["gi"] = gi
            if m["Bfr"] is not None:
                fr = m["Bfr"]
                fr.tag = f"B{gi}"
                rq.append((gi, fr, fr.dst))
            fr = m["A"]
            fr.tag = f"A{gi}"
            fr.dst = A_RING + 4 * (ring % NRING)
            fr.ringidx = ring
            ring += 1
            rq.append((gi, fr, fr.dst))
        self.rqi = 0
        PF = o.pf

        def pump(cur_gi, cur_step):
            while self.rqi < len(rq):
                gi, fr, dst = rq[self.rqi]
                if gi > cur_gi + PF:
                    break
                if max(fr.tile.first - 1, 0) > cur_step:
                    break
                if fr.tag.startswith("B") and gi - cur_gi > (8 if mfs[gi]["step"] < 13 else 0) and False:
                    break
                self.emit_frag(fr, dst)
                self.rqi += 1

        name2step = {st["name"]: st for st in steps}
        for t in range(16):
            f = self.softmax_fill(t)
            if t < 15:
                name2step[f"K{t+1}"]["fill"] = ("late", 2, f)
            else:
                name2step["V0_0"]["fill"] = ("late", 2, f + self.lfin())
        for c in range(3):
            name2step[f"V{c+1}_0"]["fill"] = ("late", 3, self.ofin_fill(c))

        stop = o.stop
        for st in steps:
            s = st["idx"]
            need = [T.name for T in (self.X + self.W + self.K + self.V + self.O) if max(T.first - 1, 0) == s]
            if s == 0:
                need += [T.name for T in (self.X + self.W) if T.first == 0]
            if need:
                self.wait_vm(set(need))
            self("s_barrier")
            if o.stamps and st["name"] in o.stampat:
                self.stamp()
            cm = f"; ---- step {s} {st['name']} dma={st['dma']}"
            self.ins.append(cm)
            if stop and st["name"] == stop:
                return False
            if "pre" in st:
                self("s_nop 7\ns_nop 3")
                for l in st["pre"]:
                    self(l)
            if st["name"] == "O3":
                self("s_nop 7\ns_nop 3")
                for l in self.ofin_fill(3):
                    self(l)
                self("s_nop 1")
            fillq = []
            dmaq = []
            for T in st["dma"]:
                dmaq += [(txt, isv, T.name) for txt, isv in self.dma_instrs(T)]
            mode = st["fill"]
            fl_start, fl = (mode[1], list(mode[2])) if mode else (0, [])
            n = len(st["mf"])
            if s == 0:
                pump(st["mf"][0]["gi"] - 1, s)
            for k, m in enumerate(st["mf"]):
                gi = m["gi"]
                pump(gi, s) if k == 0 else None
                tags = {m["A"].tag}
                if m["Bfr"] is not None:
                    tags.add(m["Bfr"].tag)
                self.wait_lg(tags)
                D = ar(m["D"], 16) if m["dacc"] else vr(m["D"], 16)
                C = "0" if m["C"] is None else D
                B = ar(m["B"], 4) if m["bacc"] else vr(m["B"], 4)
                self(f"v_mfma_f32_32x32x16_bf16 {D}, {ar(m['A'].dst, 4)}, {B}, {C}")
                pump(gi + 1, s)
                if dmaq:
                    txt, isv, tag = dmaq.pop(0)
                    if not isv:
                        self(txt)
                        txt, isv, tag = dmaq.pop(0)
                    self.vmem(txt, tag)
                if fl and k >= fl_start:
                    gaps_left = n - k
                    cnt = -(-len(fl) // gaps_left)
                    for _ in range(cnt):
                        self(fl.pop(0))
                if st["name"] == "W13" and k >= 5 and k % 2 == 1:
                    dt = (k - 5) // 2
                    for l in self.qcvt_fill(dt):
                        self(l)
                if st["name"] == "O3" and k >= 7 and k % 4 == 3:
                    self.out_tile((k - 7) // 4)
            while dmaq:
                txt, isv, tag = dmaq.pop(0)
                if isv:
                    self.vmem(txt, tag)
                else:
                    self(txt)
            assert not fl
            if st["name"] == "W13":
                self("s_nop 7\ns_nop 3")
                for dt in range(6, 8):
                    for l in self.qcvt_fill(dt):
                        self(l)
                self("s_nop 1")
            if st["name"] == "O3":
                self("s_nop 7\ns_nop 3")
                self.out_tile(13)
        return True

    def out_tile(self, nt):
        base = 16 * (nt & 3)
        pk = 64 + 8 * (nt & 3)
        for i in range(16):
            self(f"v_accvgpr_read_b32 v{base+i}, a{A_OUT + 16*nt + i}")
        for k in range(8):
            self(f"v_cvt_pk_bf16_f32 v{pk+k}, v{base+2*k}, v{base+2*k+1}")
        for beta in range(2):
            g = 2 * nt + beta
            self(f"s_mov_b32 s{S_TOFF}, {g*1024}")
            self.vmem(f"buffer_store_dwordx4 v[{pk+4*beta}:{pk+4*beta+3}], v{V_XD}, s[{SRD_P}:{SRD_P+3}], s{S_TOFF} offen sc1", "PST")

    def tail_setup(self):
        A = self
        L = V_T2
        A(f"""s_mul_i32 s{S_T}, s{S_H}, {PART_H}
        s_mul_i32 s{S_T2}, s{S_W}, {PART_T}
        s_add_u32 s{S_T}, s{S_T}, s{S_T2}
        v_lshlrev_b32 v{V_XD}, 4, v{L}
        v_add_u32 v{V_XD}, s{S_T}, v{V_XD}
        v_and_b32 v{V_XD+1}, 31, v{L}
        s_lshl_b32 s{S_T2}, s{S_W}, 5
        v_add_u32 v{V_XD+1}, s{S_T2}, v{V_XD+1}
        v_cmp_gt_u32 vcc, 112, v{V_XD+1}
        v_mov_b32 v{V_XD+2}, 0x40000000
        v_cndmask_b32 v{V_XD}, v{V_XD+2}, v{V_XD}, vcc""")

    def tail(self):
        A = self
        L = V_T2
        P = S_PTR
        A("; ---- tail")
        A(f"s_waitcnt vmcnt(0)\ns_barrier")
        self.stamp()
        A(f"s_cmp_lg_u32 s{S_W}, 0\ns_cbranch_scc1 L_polled")
        A(f"""v_mov_b32 v1, s{S_B}
        v_lshlrev_b32 v1, 2, v1
        v_add_u32 v1, 128, v1
        s_mov_b32 s{S_CNT}, 0
        L_nonce:
        global_load_dword v2, v1, s[{P+12}:{P+13}] sc1
        s_add_u32 s{S_CNT}, s{S_CNT}, 1
        s_waitcnt vmcnt(0)
        v_readfirstlane_b32 s{S_NONCE}, v2
        s_cmp_gt_u32 s{S_CNT}, 100000
        s_cbranch_scc1 L_givenup
        s_cmp_eq_u32 s{S_NONCE}, 0
        s_cbranch_scc1 L_nonce
        v_mov_b32 v3, s{S_NONCE}
        v_mov_b32 v4, s{S_H}
        v_lshlrev_b32 v4, 7, v4
        v_lshlrev_b32 v5, 7, v{L}
        s_mov_b64 s[{S_EX}:{S_EX+1}], exec
        s_mov_b64 exec, 1
        buffer_store_dword v3, v4, s[{SRD_F}:{SRD_F+3}], 0 offen sc1
        s_mov_b64 exec, 0xffff
        s_mov_b32 s{S_CNT}, 0
        L_poll:
        buffer_load_dword v6, v5, s[{SRD_F}:{SRD_F+3}], 0 offen sc1
        s_add_u32 s{S_CNT}, s{S_CNT}, 1
        s_waitcnt vmcnt(0)
        v_cmp_ne_u32 vcc, v6, v3
        s_cmp_gt_u32 s{S_CNT}, 100000
        s_cbranch_scc1 L_pdone
        s_cbranch_vccnz L_poll
        L_pdone:
        s_mov_b64 exec, s[{S_EX}:{S_EX+1}]
        L_givenup:
        L_polled:
        s_barrier""")
        self.stamp()
        A(f"""s_and_b32 s{S_T}, s{S_H}, 3
        s_lshr_b32 s{S_T2}, s{S_H}, 2
        s_mul_i32 s{S_T2}, s{S_T2}, 7
        s_add_u32 s{S_T2}, s{S_T2}, s{S_W}
        s_mul_i32 s{S_T3}, s{S_T}, {PART_T}
        s_lshl_b32 s54, s{S_T2}, 10
        s_add_u32 s54, s54, s{S_T3}
        v_lshlrev_b32 v1, 4, v{L}
        v_add_u32 v1, s54, v1
        v_and_b32 v2, 31, v{L}
        s_lshl_b32 s55, s{S_T}, 5
        v_add_u32 v2, s55, v2
        v_cmp_gt_u32 vcc, 112, v2
        v_mov_b32 v3, 0x40000000
        v_cndmask_b32 v1, v3, v1, vcc
        v_mul_u32_u24 v4, 896, v2
        v_lshrrev_b32 v5, 5, v{L}
        v_lshl_add_u32 v4, v5, 4, v4
        s_lshl_b32 s55, s{S_T2}, 5
        v_add_u32 v4, s55, v4
        v_cndmask_b32 v4, v3, v4, vcc
        s_mov_b32 s58, 0x00003f80
        s_mov_b32 s59, 0x3f800000""")
        for un in range(2):
            if un == 1:
                A(f"s_cmp_eq_u32 s{S_W}, 3\ns_cbranch_scc1 L_one_unit")
            for hh in range(16):
                A(f"s_mov_b32 s{S_TOFF}, {hh*PART_H + un*4096}")
                r = 16 + 64 * un + 4 * hh
                A(f"buffer_load_dwordx4 v[{r}:{r+3}], v1, s[{SRD_P}:{SRD_P+3}], s{S_TOFF} offen sc1")
        def reduce(un, nyounger):
            acc = 144 + 8 * un
            for hh in range(16):
                r = 16 + 64 * un + 4 * hh
                A(f"s_waitcnt vmcnt({nyounger + 15 - hh})")
                for k in range(4):
                    if hh == 0:
                        A(f"v_dot2_f32_bf16 v{acc+2*k}, v{r+k}, s58, 0")
                        A(f"v_dot2_f32_bf16 v{acc+2*k+1}, v{r+k}, s59, 0")
                    else:
                        A(f"v_dot2_f32_bf16 v{acc+2*k}, v{r+k}, s58, v{acc+2*k}")
                        A(f"v_dot2_f32_bf16 v{acc+2*k+1}, v{r+k}, s59, v{acc+2*k+1}")
            A("s_nop 2")
            for k in range(4):
                A(f"v_cvt_pk_bf16_f32 v{160+4*un+k}, v{acc+2*k}, v{acc+2*k+1}")
            A(f"buffer_store_dwordx4 v[{160+4*un}:{163+4*un}], v4, s[{SRD_OUT}:{SRD_OUT+3}], 0 offen offset:{128*un}")
        reduce(0, 16)
        reduce(1, 1)
        A("s_branch L_fin\nL_one_unit:")
        reduce(0, 0)
        A("L_fin:")

    def dump_regs(self, kind, start, n):
        A = self
        P = S_PTR
        A("s_waitcnt vmcnt(0) lgkmcnt(0)\ns_nop 7\ns_nop 7")
        A(f"""s_lshl_b32 s{S_T}, s2, 2
        s_add_u32 s{S_T}, s{S_T}, s{S_W}
        s_mul_i32 s{S_T}, s{S_T}, {n*256}
        s_add_u32 s{S_T}, s{S_T}, {WS_DBG}
        s_add_u32 s60, s{P+14}, s{S_T}
        s_addc_u32 s61, s{P+15}, 0
        s_mov_b32 s62, {n*256}
        s_mov_b32 s63, 0x20000
        v_lshlrev_b32 v{V_T0}, 2, v{V_T2}""")
        for i in range(n):
            A(f"s_mov_b32 s{S_TOFF}, {i*256}")
            if kind == "a":
                A(f"buffer_store_dword a{start+i}, v{V_T0}, s[60:63], s{S_TOFF} offen")
            else:
                A(f"buffer_store_dword v{start+i}, v{V_T0}, s[60:63], s{S_TOFF} offen")
        A("s_waitcnt vmcnt(0)")

    def write_stamps(self):
        if not self.o.stamps:
            return
        A = self
        P = S_PTR
        n = self.nstamp
        A(f"""s_waitcnt lgkmcnt(0)
        s_mul_i32 s{S_T}, s2, {8*self.o.nstamps}
        s_add_u32 s60, s{P+14}, s{S_T}
        s_addc_u32 s61, s{P+15}, 0
        s_add_u32 s60, s60, {WS_STAMP}
        s_addc_u32 s61, s61, 0
        s_cmp_lg_u32 s{S_W}, 0
        s_cbranch_scc1 L_nostamp
        s_mov_b64 exec, 1
        v_mov_b32 v1, 0""")
        assert n <= self.o.nstamps, n
        if self.o.dbgstamps:
            k0, k1 = S_STAMP, S_STAMP + 2 * (n - 1)
            A(f"v_mov_b32 v2, s{k1}\nglobal_atomic_umax v1, v2, s[{P+12}:{P+13}]")
            A(f"s_not_b32 s{S_T}, s{k0}\nv_mov_b32 v2, s{S_T}\nglobal_atomic_umax v1, v2, s[{P+12}:{P+13}] offset:4")
            A(f"s_cmp_lg_u32 s2, {self.o.dbgwg}\ns_cbranch_scc1 L_nostamp")
            for i in range(1, n):
                k = S_STAMP + 2 * i
                A(f"s_sub_u32 s{S_T}, s{k}, s{k0}\nv_mov_b32 v2, s{S_T}\nglobal_store_dword v1, v2, s[{P+12}:{P+13}] offset:{4*(i+1)}\ns_nop 1")
            A("s_waitcnt vmcnt(0)\nL_nostamp:")
            return
        for i in range(self.o.nstamps):
            k = S_STAMP + 2 * min(i, n - 1)
            A(f"v_mov_b32 v2, s{k}\nv_mov_b32 v3, s{k+1}\nglobal_store_dwordx2 v1, v[2:3], s[60:61] offset:{8*i}\ns_nop 1")
        A("s_waitcnt vmcnt(0)\nL_nostamp:")

    def generate(self):
        o = self.o
        self.build()
        self.plan_dma()
        self.prologue()
        for T in self.init_tiles:
            if T.kind in "XWK":
                self.emit_dma(T)
        self.prologue2()
        self(f"s_mov_b32 s{S_T3}, 0x47800000")
        done = self.emit_main_wrap()
        if done:
            self.tail()
            if o.stamps:
                self("s_waitcnt vmcnt(0)")
                self.stamp()
        self.write_stamps()
        self("L_end:\ns_endpgm")
        self.rare_code()
        self("L_code_end:")
        return self.finish()

    def emit_main_wrap(self):
        o = self.o
        steps = self.steps
        for st in steps:
            if st["name"] == "K1":
                st["hook"] = True
        done = self._emit_with_hooks()
        if not done:
            kind, start, n = o.dump
            self.dump_regs(kind, start, n)
        return done

    def _emit_with_hooks(self):
        done = self.emit_main()
        if done:
            out = []
            save = self.ins
            self.ins = []
            self.tail_setup()
            setup = self.ins
            self.ins = save
            for l in self.ins:
                out.append(l)
                if l.startswith("; ---- step") and " K1 " in l:
                    out += setup
            self.ins = out
        return done

    def finish(self):
        ins = fix_hazards(self.ins, self.o.verbose)
        hdr = []
        hdr.append("; @launch grid=(256,1,1) block=(256,1,1) lds=163840")
        hdr.append('.amdgcn_target "amdgcn-amd-amdhsa--gfx950"')
        hdr.append(".text")
        hdr.append(f".globl {NAME}\n.p2align 8\n.type {NAME},@function\n{NAME}:")
        body = "\n".join(ins)
        nbytes = estimate_size(ins)
        ntouch = min(64, -(-(-(-nbytes // 128)) // 32))
        body = body.replace("CODE_TOUCH_N", str(ntouch))
        tail = f""".section .rodata,"a"
.p2align 6
.amdhsa_kernel {NAME}
  .amdhsa_next_free_vgpr 512
  .amdhsa_next_free_sgpr 102
  .amdhsa_accum_offset 256
  .amdhsa_group_segment_fixed_size 0
  .amdhsa_kernarg_size 64
  .amdhsa_user_sgpr_count 2
  .amdhsa_user_sgpr_kernarg_segment_ptr 1
  .amdhsa_system_sgpr_workgroup_id_x 1
.end_amdhsa_kernel"""
        if self.o.verbose:
            print("code bytes ~", nbytes, "touch lanes", ntouch, file=sys.stderr)
        return "\n".join(hdr) + "\n" + body + "\n" + tail + "\n"


REG_RE = re.compile(r"(-?)\b([vas])(?:\[(\d+):(\d+)\]|(\d+))(?![\w\[])")


def regs_of(op):
    out = []
    for m in REG_RE.finditer(op):
        k = m.group(2)
        if m.group(3) is not None:
            out += [(k, i) for i in range(int(m.group(3)), int(m.group(4)) + 1)]
        else:
            out.append((k, int(m.group(5))))
    return out


TRANS = ("v_exp_f32", "v_log_f32", "v_rcp_f32", "v_rsq_f32", "v_sqrt_f32")


def parse(l):
    l0 = l.split(";")[0].strip()
    if not l0 or l0.endswith(":") or l0.startswith("."):
        return None
    parts = l0.split(None, 1)
    mn = parts[0]
    ops = [x.strip() for x in parts[1].split(",")] if len(parts) > 1 else []
    d = dict(mn=mn, w=set(), r=set(), c=set(), kind="other")
    if mn.startswith("v_mfma"):
        d["kind"] = "mfma"
        d["w"] = set(regs_of(ops[0]))
        d["ab"] = set(regs_of(ops[1])) | set(regs_of(ops[2]))
        d["c"] = set(regs_of(ops[3]))
        d["r"] = d["ab"] | d["c"]
    elif mn.startswith("v_"):
        d["kind"] = "valu"
        if mn.startswith("v_cmp"):
            d["w"] = set(regs_of(ops[0])) | ({("s", "vcc")} if ops[0] == "vcc" else set())
            d["r"] = set(x for o in ops[1:] for x in regs_of(o))
        elif mn.startswith("v_permlane32_swap") or mn.startswith("v_permlane16_swap"):
            d["w"] = set(regs_of(ops[0])) | set(regs_of(ops[1]))
            d["r"] = set(d["w"])
            d["perm"] = True
        elif mn.startswith("v_readfirstlane") or mn.startswith("v_readlane"):
            d["w"] = set(regs_of(ops[0]))
            d["r"] = set(x for o in ops[1:] for x in regs_of(o))
            d["rfl"] = True
        else:
            d["w"] = set(regs_of(ops[0]))
            d["r"] = set(x for o in ops[1:] for x in regs_of(o))
            if "vcc" in ops[1:]:
                d["r"].add(("s", "vcc"))
            if mn.startswith("v_fmac") or mn.startswith("v_dot2c"):
                d["r"] |= d["w"]
        d["trans"] = mn.split("_e")[0] in TRANS or mn in TRANS
    elif mn.startswith("ds_read"):
        d["kind"] = "ds"
        d["w"] = set(regs_of(ops[0]))
        d["r"] = set(regs_of(ops[1].split()[0]))
    elif mn.startswith("ds_write"):
        d["kind"] = "ds"
        d["r"] = set(x for o in ops for x in regs_of(o.split()[0]))
    elif mn.startswith("buffer_") or mn.startswith("global_"):
        d["kind"] = "vmem"
        allr = [regs_of(o.split()[0]) if o else [] for o in ops]
        if "store" in mn or "atomic" in mn:
            d["r"] = set(x for a in allr for x in a)
            d["store"] = True
            big = "x4" in mn or "x3" in mn
            if big:
                src = allr[0] if mn.startswith("buffer_") else allr[1]
                d["stdata"] = set(src)
        elif " lds" in l0:
            d["r"] = set(x for a in allr for x in a)
            d["dma"] = True
        else:
            d["w"] = set(allr[0])
            d["r"] = set(x for a in allr[1:] for x in a)
    elif mn.startswith("s_"):
        d["kind"] = "salu"
        if mn == "s_nop":
            d["nop"] = int(ops[0]) + 1
        if ops and (ops[0] == "m0"):
            d["m0w"] = True
        if ops and not mn.startswith("s_cmp") and not mn.startswith("s_cbranch") and not mn.startswith("s_waitcnt"):
            d["w"] = set(regs_of(ops[0]))
        d["r"] = set(x for o in ops[1:] for x in regs_of(o))
    return d


def fix_hazards(ins, verbose=False):
    out = []
    last = {}
    pos = 0
    inserted = 0
    mf_w, mf_c, valu_w, trans_w, valu_sw, st_data = {}, {}, {}, {}, {}, {}
    m0w = -100
    for l in ins:
        d = parse(l)
        if d is None:
            out.append(l)
            continue
        need = 0

        def req(table, regs, n):
            nonlocal need
            for r in regs:
                if r in table:
                    need = max(need, table[r] + n + 1 - pos)
        k = d["kind"]
        if k == "mfma":
            req(valu_w, d["r"], 2)
            req(mf_w, d["ab"], 12)
            for r in d["c"]:
                if r in mf_w and d["c"] != mf_w_set.get(r, None):
                    need = max(need, mf_w[r] + 10 + 1 - pos)
        elif k == "valu":
            req(mf_w, d["r"] | d["w"], 12)
            req(mf_c, d["w"], 7)
            if not d.get("trans"):
                req(trans_w, d["r"], 1)
            else:
                req(trans_w, d["r"], 1)
            if d.get("perm"):
                req(valu_w, d["r"], 2)
            if d.get("rfl"):
                req(valu_w, d["r"], 1)
            req(valu_sw, set(r for r in d["r"] if r[0] == "s"), 2)
            req(st_data, d["w"], 2)
        elif k in ("ds", "vmem"):
            req(mf_w, d["r"] | d["w"], 12)
            req(valu_sw, set(r for r in d["r"] if r[0] == "s"), 5)
            req(trans_w, d["r"], 1)
            if d.get("dma"):
                need = max(need, m0w + 1 + 1 - pos)
        if need > 0:
            n = need
            while n > 0:
                c = min(n, 8)
                out.append(f"s_nop {c-1}")
                pos += c
                n -= c
            inserted += need
            if verbose:
                print(f"  hazard nop {need} before: {l}", file=sys.stderr)
        out.append(l)
        if k == "mfma":
            for r in d["w"]:
                mf_w[r] = pos
                mf_w_set[r] = d["w"]
            for r in d["c"]:
                mf_c[r] = pos
        elif k == "valu":
            for r in d["w"]:
                if r[0] == "s":
                    valu_sw[r] = pos
                else:
                    valu_w[r] = pos
                    if d.get("trans"):
                        trans_w[r] = pos
                    else:
                        trans_w.pop(r, None)
                    mf_w.pop(r, None)
        elif k == "vmem" and "stdata" in d:
            for r in d["stdata"]:
                st_data[r] = pos
        elif k == "salu":
            if d.get("m0w"):
                m0w = pos
            for r in d["w"]:
                valu_sw.pop(r, None)
        pos += d.get("nop", 1)
    if verbose:
        print("hazard nops inserted:", inserted, file=sys.stderr)
    return out


mf_w_set = {}


def estimate_size(ins):
    n = 0
    for l in ins:
        d = parse(l)
        if d is None:
            continue
        n += 8
    return n


def main():
    ap = argparse.ArgumentParser()
    ap.add_argument("-o", default="k.s")
    ap.add_argument("--kpol", default="")
    ap.add_argument("--vpol", default="")
    ap.add_argument("--wpol", default="")
    ap.add_argument("--pf", type=int, default=6)
    ap.add_argument("--k0", type=int, default=4)
    ap.add_argument("--dmarate", type=int, default=2)
    ap.add_argument("--stamps", action="store_true")
    ap.add_argument("--nstamps", type=int, default=10)
    ap.add_argument("--stampat", default="K0,V0_0,O3")
    ap.add_argument("--dbgstamps", action="store_true")
    ap.add_argument("--dbgwg", type=int, default=0)
    ap.add_argument("--stop", default="")
    ap.add_argument("--dump", default="v,0,128")
    ap.add_argument("--nocodetouch", dest="codetouch", action="store_false")
    ap.add_argument("-v", dest="verbose", action="store_true")
    o = ap.parse_args()
    o.kpol = o.kpol.replace("_", " ")
    o.vpol = o.vpol.replace("_", " ")
    o.wpol = o.wpol.replace("_", " ")
    o.stampat = o.stampat.split(",")
    k, a, b = o.dump.split(",")
    o.dump = (k, int(a), int(b))
    g = Gen(o)
    open(o.o, "w").write(g.generate())


if __name__ == "__main__":
    main()
```

```python
import re, sys, argparse

NAME = "standalone__mha_block_cached__near_ridge_kernel"

S_W, S_B, S_H, S_LDSW, S_T = 3, 4, 5, 6, 7
SRD_X, SRD_W, SRD_K, SRD_V, SRD_O, SRD_P, SRD_OUT, SRD_F = 8, 12, 16, 20, 24, 28, 32, 36
S_TOFF, S_C, S_T2, S_T3 = 44, 45, 46, 47
S_RET = 48
S_EX = 50
S_NONCE, S_CNT = 52, 53
S_GX, S_GW, S_GV, S_GO = 40, 41, 42, 43
S_PTR = 64
S_STAMP = 80

V_P = 0
V_S = [128, 144]
V_PT = 192
V_OA = [160, 128]
V_OPK = 192
V_XD, V_WD, V_KD, V_VD, V_OD = 208, 212, 216, 220, 224
V_XR, V_WR, V_KR, V_VR, V_OR = 228, 232, 236, 244, 246
V_L, V_NM, V_RI, V_LT, V_LT2, V_T0, V_T1, V_T2 = 248, 249, 250, 251, 252, 253, 254, 255

A_Q = 0
A_XB = 64
A_OUT = 0
A_RING = 224
NRING = 8

SLOT = 16384
NSLOT = 10

WS_PART = 0
PART_T = 28 * 1024
PART_H = 4 * PART_T
PART_B = 16 * PART_H
WS_FLAG = 64 * 1024 * 1024
WS_DBG = 96 * 1024 * 1024
WS_STAMP = 200 * 1024 * 1024


def vr(a, n=1):
    return f"v{a}" if n == 1 else f"v[{a}:{a+n-1}]"


def ar(a, n=1):
    return f"a{a}" if n == 1 else f"a[{a}:{a+n-1}]"


def sr(a, n=1):
    return f"s{a}" if n == 1 else f"s[{a}:{a+n-1}]"


class Tile:
    def __init__(self, kind, idx):
        self.kind, self.idx = kind, idx
        self.name = f"{kind}{idx}"
        self.slot = None
        self.first = None
        self.last = None
        self.issue = None

    def __repr__(self):
        return self.name


class Frag:
    def __init__(self, tile, reads, dst=None):
        self.tile, self.reads, self.dst = tile, reads, dst
        self.tag = None


class Gen:
    def __init__(self, opt):
        self.o = opt
        self.ins = []
        self.vm = []
        self.vm_done = -1
        self.lg = []
        self.lg_done = -1
        self.addr_slot = {}
        self.nstamp = 0

    def __call__(self, s):
        for l in s.split("\n"):
            l = l.strip()
            if l:
                self.ins.append(l)

    def vmem(self, s, tag):
        if self.o.nodma and " lds" in s:
            return
        if s == "s_nop 0":
            return
        self(s)
        self.vm.append(tag)

    def lds(self, s, tag):
        if self.o.nomfma:
            return
        self(s)
        self.lg.append(tag)

    def wait_vm(self, tags):
        idx = -1
        for i, t in enumerate(self.vm):
            if t in tags:
                idx = i
        if idx <= self.vm_done:
            return
        n = len(self.vm) - 1 - idx
        self(f"s_waitcnt vmcnt({min(n, 63)})")
        self.vm_done = idx if n <= 63 else max(self.vm_done, len(self.vm) - 1 - 63)
        assert self.vm_done >= idx

    def wait_vm_all(self):
        self("s_waitcnt vmcnt(0)")
        self.vm_done = len(self.vm) - 1

    def wait_lg(self, tags):
        idx = -1
        for i in range(len(self.lg) - 1, -1, -1):
            if self.lg[i] in tags:
                idx = i
                break
        if idx <= self.lg_done:
            return
        n = len(self.lg) - 1 - idx
        assert n <= 15, f"lgkmcnt overflow {n}"
        self(f"s_waitcnt lgkmcnt({n})")
        self.lg_done = idx

    STAMP_REGS = list(range(80, 100)) + list(range(64, 76))

    def stamp(self):
        if self.o.stamps:
            k = self.STAMP_REGS[self.nstamp]
            self(f"{'s_memtime' if self.o.cyc else 's_memrealtime'} s[100:101]")
            self("s_waitcnt lgkmcnt(0)")
            self(f"s_mov_b32 s{k}, s100")
            self.lg_done = len(self.lg) - 1
            self.nstamp += 1

    def dma_instrs(self, T):
        k = T.kind
        pol = self.o.kpol if k == "K" else (self.o.vpol if k == "V" else self.o.wpol)
        pre = f"s_add_u32 m0, s{S_LDSW}, {T.slot * SLOT}"
        post = None
        soff = f"s{S_TOFF}"
        if k == "X":
            srd, va, soff = SRD_X, V_XD, f"s{S_GX}"
            pre += "\ns_nop 0"
            post = f"s_add_u32 s{S_GX}, s{S_GX}, 128\ns_cmp_eq_u32 s{S_GX}, 896\ns_cselect_b32 s{S_GX}, 0, s{S_GX}"
        elif k == "W":
            srd, va, soff = SRD_W, V_WD, f"s{S_GW}"
            pre += "\ns_nop 0"
            post = f"s_add_u32 s{S_GW}, s{S_GW}, 262144\ns_cmp_eq_u32 s{S_GW}, 3670016\ns_cselect_b32 s{S_GW}, 0, s{S_GW}"
        elif k == "K":
            srd, va = SRD_K, V_KD
            pre += f"\ns_mov_b32 s{S_TOFF}, {T.idx * 16384}"
        elif k == "V":
            c, u = T.idx // 4, T.idx % 4
            srd, va = SRD_V, V_VD
            pre += f"\ns_add_u32 s{S_TOFF}, s{S_GV}, {u * 65536}"
            if u == 3:
                post = f"s_add_u32 s{S_GV}, s{S_GV}, 128\ns_and_b32 s{S_GV}, s{S_GV}, 511"
        elif k == "O":
            c, kap = T.idx // 4, T.idx % 4
            srd, va = SRD_O, V_OD
            pre += f"\ns_add_u32 s{S_TOFF}, s{S_GO}, {kap * 14336}"
            if kap == 3:
                post = f"s_add_u32 s{S_GO}, s{S_GO}, 57344\ns_cmp_eq_u32 s{S_GO}, 229376\ns_cselect_b32 s{S_GO}, 0, s{S_GO}"
        out = [(pre, False)]
        if k in self.o.skip:
            return [(pre, False), ("s_nop 0", True)]
        for j in range(4):
            txt = f"buffer_load_dwordx4 v{va + j}, s[{srd}:{srd+3}], {soff} offen offset:{j*1024}{pol} lds"
            if j == 3 and post:
                txt += "\n" + post
            out.append((txt, True))
        return out

    def emit_dma(self, T):
        for txt, isv in self.dma_instrs(T):
            if isv:
                self.vmem(txt, T.name)
            else:
                self(txt)

    def emit_frag(self, F, dst, isacc=True):
        for (mn, areg, imm, doff, dn) in F.reads:
            cur = self.addr_slot.get(areg, 0)
            if cur != F.tile.slot:
                d = ((F.tile.slot - cur) * SLOT) & 0xFFFFFFFF
                self(f"v_add_u32 v{areg}, 0x{d:x}, v{areg}")
                self.addr_slot[areg] = F.tile.slot
            self.lds(f"{mn} {ar(dst + doff, dn)}, v{areg} offset:{imm}", F.tag)

    def fragW(self, T, sp, dt):
        m, hi = dt & 3, dt >> 2
        return Frag(T, [("ds_read_b64_tr_b16", V_WR + m, (16 * sp + 4 * rho) * 512 + 256 * hi, 2 * rho, 2) for rho in range(2)])

    def fragX(self, T, sp):
        return Frag(T, [("ds_read_b128", V_XR + sp, 0, 0, 4)])

    def fragK(self, T, sig):
        return Frag(T, [("ds_read_b128", V_KR + (sig & 7), 256 * (sig >> 3), 0, 4)])

    def fragV(self, T, tau, dl):
        return Frag(T, [("ds_read_b64_tr_b16", V_VR + dl, tau * 2048 + rho * 1024, 2 * rho, 2) for rho in range(2)])

    def fragO(self, T, nt):
        return Frag(T, [("ds_read_b64_tr_b16", V_OR + (nt & 1), rho * 8 * 896 + 128 * (nt >> 1), 2 * rho, 2) for rho in range(2)])

    def prologue(self):
        A = self
        o = self.o
        A(f"s_cmp_ge_u32 s2, 256\ns_cbranch_scc1 L_end")
        self.stamp_first = True
        if o.stamps:
            self.stamp()
        A(f"s_load_dwordx16 s[{S_PTR}:{S_PTR+15}], s[0:1], 0")
        if o.codetouch:
            A("s_getpc_b64 s[56:57]")
            A(f"s_lshr_b32 s{S_T}, s2, 3\ns_lshl_b32 s{S_T}, s{S_T}, 7")
            A(f"v_lshlrev_b32 v1, 12, v0\nv_add_u32 v1, s{S_T}, v1")
            A(f"v_cmp_gt_u32 vcc, CODE_TOUCH_N, v0\ns_and_saveexec_b64 s[{S_EX}:{S_EX+1}], vcc\ns_cbranch_execz L_notouch")
            A("global_load_dword v2, v1, s[56:57]")
            A(f"L_notouch:\ns_mov_b64 exec, s[{S_EX}:{S_EX+1}]")
        A(f"v_lshrrev_b32 v1, 6, v0")
        A(f"v_and_b32 v{V_T2}, 63, v0")
        A(f"v_readfirstlane_b32 s{S_W}, v1")
        A(f"""s_and_b32 s{S_T}, s2, 7
        s_lshr_b32 s{S_T2}, s2, 3
        s_lshr_b32 s{S_B}, s{S_T}, 2
        s_lshl_b32 s{S_B}, s{S_B}, 3
        s_lshr_b32 s{S_T3}, s{S_T2}, 2
        s_add_u32 s{S_B}, s{S_B}, s{S_T3}
        s_and_b32 s{S_H}, s{S_T}, 3
        s_lshl_b32 s{S_H}, s{S_H}, 2
        s_and_b32 s{S_T3}, s{S_T2}, 3
        s_add_u32 s{S_H}, s{S_H}, s{S_T3}
        s_lshl_b32 s{S_LDSW}, s{S_W}, 12""")
        if o.rotate:
            A(f"""s_and_b32 s{S_T}, s{S_H}, 3
            s_lshl_b32 s{S_T}, s{S_T}, 1
            s_add_u32 s{S_T}, s{S_T}, s{S_B}
            s_mul_i32 s{S_T2}, s{S_T}, 37
            s_lshr_b32 s{S_T2}, s{S_T2}, 8
            s_mul_i32 s{S_T2}, s{S_T2}, 7
            s_sub_u32 s{S_T}, s{S_T}, s{S_T2}
            s_lshl_b32 s{S_GX}, s{S_T}, 7
            s_lshl_b32 s{S_GW}, s{S_T}, 19
            s_and_b32 s{S_T}, s{S_B}, 3
            s_lshl_b32 s{S_GV}, s{S_T}, 7
            s_mul_i32 s{S_GO}, s{S_T}, 57344""")
        else:
            A(f"s_mov_b32 s{S_GX}, 0\ns_mov_b32 s{S_GW}, 0\ns_mov_b32 s{S_GV}, 0\ns_mov_b32 s{S_GO}, 0")
        L = V_T2
        A(f"""v_lshrrev_b32 v3, 3, v{L}
        v_and_b32 v4, 7, v{L}
        v_lshrrev_b32 v5, 4, v{L}
        v_lshrrev_b32 v6, 5, v{L}
        v_and_b32 v7, 31, v{L}""")
        A(f"s_lshl_b32 s{S_T}, s{S_W}, 5\nv_add_u32 v8, s{S_T}, v3")
        A("v_mul_u32_u24 v8, 896, v8")
        for j in range(4):
            A(f"v_add_u32 v9, {4*j}, v5\nv_and_b32 v9, 7, v9\nv_xor_b32 v9, v4, v9\nv_lshl_add_u32 v9, v9, 4, v8")
            A(f"v_add_u32 v{V_XD+j}, {j*(8*896-1024)}, v9")
        A(f"s_lshl_b32 s{S_T}, s{S_W}, 3\nv_add_u32 v8, s{S_T}, v6")
        A("v_lshlrev_b32 v10, 13, v8")
        for j in range(4):
            A(f"v_add_u32 v9, {2*j}, v6\nv_and_b32 v9, 3, v9\nv_lshlrev_b32 v9, 2, v9\nv_xor_b32 v9, v7, v9\nv_lshl_add_u32 v9, v9, 4, v10")
            A(f"v_add_u32 v{V_WD+j}, {j*(2*8192-1024)}, v9")
        A("v_lshlrev_b32 v10, 9, v8")
        for j in range(4):
            A(f"v_add_u32 v9, {2*j}, v8\nv_and_b32 v9, 15, v9\nv_xor_b32 v9, v7, v9\nv_lshl_add_u32 v{V_KD+j}, v9, 4, v10")
        A("s_waitcnt lgkmcnt(0)")
        P = S_PTR
        A(f"""s_mul_i32 s{S_T}, s{S_B}, 100352
        s_add_u32 s{SRD_X}, s{P}, s{S_T}
        s_addc_u32 s{SRD_X+1}, s{P+1}, 0
        s_mov_b32 s{SRD_X+2}, 100352
        s_mov_b32 s{SRD_X+3}, 0x20000
        s_lshl_b32 s{S_T}, s{S_H}, 9
        s_add_u32 s{SRD_W}, s{P+6}, s{S_T}
        s_addc_u32 s{SRD_W+1}, s{P+7}, 0
        s_sub_u32 s{SRD_W+2}, 3670016, s{S_T}
        s_mov_b32 s{SRD_W+3}, 0x20000
        s_lshl_b32 s{S_T}, s{S_B}, 4
        s_add_u32 s{S_T}, s{S_T}, s{S_H}
        s_lshl_b32 s{S_T}, s{S_T}, 18
        s_add_u32 s{SRD_K}, s{P+2}, s{S_T}
        s_addc_u32 s{SRD_K+1}, s{P+3}, 0
        s_mov_b32 s{SRD_K+2}, 262144
        s_mov_b32 s{SRD_K+3}, 0x20000
        s_add_u32 s{SRD_V}, s{P+4}, s{S_T}
        s_addc_u32 s{SRD_V+1}, s{P+5}, 0
        s_mov_b32 s{SRD_V+2}, 262144
        s_mov_b32 s{SRD_V+3}, 0x20000""")

    def prologue2(self):
        A = self
        P = S_PTR
        L = V_T2
        A(f"""s_mul_i32 s{S_T}, s{S_H}, 229376
        s_add_u32 s{SRD_O}, s{P+8}, s{S_T}
        s_addc_u32 s{SRD_O+1}, s{P+9}, 0
        s_mov_b32 s{SRD_O+2}, 229376
        s_mov_b32 s{SRD_O+3}, 0x20000
        s_mul_i32 s{S_T}, s{S_B}, {PART_B}
        s_add_u32 s{SRD_P}, s{P+14}, s{S_T}
        s_addc_u32 s{SRD_P+1}, s{P+15}, 0
        s_mov_b32 s{SRD_P+2}, {PART_B}
        s_mov_b32 s{SRD_P+3}, 0x20000
        s_mul_i32 s{S_T}, s{S_B}, 100352
        s_add_u32 s{SRD_OUT}, s{P+10}, s{S_T}
        s_addc_u32 s{SRD_OUT+1}, s{P+11}, 0
        s_mov_b32 s{SRD_OUT+2}, 100352
        s_mov_b32 s{SRD_OUT+3}, 0x20000
        s_lshl_b32 s{S_T}, s{S_B}, 11
        s_add_u32 s{S_T}, s{S_T}, {WS_FLAG}
        s_add_u32 s{SRD_F}, s{P+14}, s{S_T}
        s_addc_u32 s{SRD_F+1}, s{P+15}, 0
        s_mov_b32 s{SRD_F+2}, 2048
        s_mov_b32 s{SRD_F+3}, 0x20000
        s_mov_b32 s{S_C}, 0x3db8aa3b""")
        A(f"s_lshl_b32 s{S_T}, s{S_W}, 5\nv_add_u32 v8, s{S_T}, v3\nv_lshlrev_b32 v8, 9, v8")
        A("v_and_b32 v9, 1, v5\nv_lshlrev_b32 v9, 2, v9\nv_xor_b32 v9, v4, v9\nv_lshl_add_u32 v9, v9, 4, v8")
        for j in range(4):
            A(f"v_add_u32 v{V_VD+j}, {j*(8*512-1024)}, v9")
        A(f"s_lshl_b32 s{S_T}, s{S_W}, 8\nv_add_u32 v8, s{S_T}, v{L}")
        A(f"s_mov_b32 s{S_T2}, 1171")
        for j in range(4):
            A(f"""v_add_u32 v9, {64*j}, v8
            v_mul_u32_u24 v10, s{S_T2}, v9
            v_lshrrev_b32 v10, 16, v10
            v_mul_u32_u24 v11, 56, v10
            v_sub_u32 v11, v9, v11
            v_lshrrev_b32 v12, 1, v10
            v_and_b32 v12, 1, v12
            v_lshlrev_b32 v12, 2, v12
            v_xor_b32 v11, v11, v12
            v_mul_u32_u24 v10, 896, v10
            v_lshl_add_u32 v11, v11, 4, v10
            v_subrev_u32 v11, {1024*j}, v11
            v_cmp_gt_u32 vcc, 896, v9
            v_mov_b32 v12, 0x40000000
            v_cndmask_b32 v{V_OD+j}, v12, v11, vcc""")
        A(f"""v_and_b32 v8, 1, v5
        v_lshrrev_b32 v9, 2, v{L}
        v_and_b32 v9, 3, v9
        v_and_b32 v10, 3, v{L}
        v_and_b32 v11, 1, v10
        v_lshrrev_b32 v12, 1, v10""")
        A("""v_lshl_add_u32 v13, v6, 3, v9
        v_lshlrev_b32 v13, 9, v13
        v_lshl_add_u32 v14, v8, 1, v11
        v_lshl_add_u32 v13, v14, 4, v13
        v_lshl_add_u32 v13, v12, 3, v13""")
        for m in range(4):
            A(f"v_xor_b32 v14, {m}, v9\nv_lshl_add_u32 v{V_WR+m}, v14, 6, v13")
        A(f"s_lshl_b32 s{S_T}, s{S_W}, 5\nv_add_u32 v13, s{S_T}, v7\nv_lshrrev_b32 v14, 1, v13\nv_and_b32 v14, 7, v14\nv_lshlrev_b32 v13, 7, v13")
        for s in range(4):
            A(f"v_add_u32 v15, {2*s}, v6\nv_xor_b32 v15, v15, v14\nv_lshl_add_u32 v{V_XR+s}, v15, 4, v13")
        A("v_lshlrev_b32 v13, 9, v7\nv_and_b32 v14, 15, v7")
        for m in range(8):
            A(f"v_add_u32 v15, {2*m}, v6\nv_xor_b32 v15, v15, v14\nv_lshl_add_u32 v{V_KR+m}, v15, 4, v13")
        A("""v_lshl_add_u32 v13, v6, 2, v9
        v_lshrrev_b32 v14, 1, v9
        v_lshl_add_u32 v15, v8, 1, v12
        v_lshlrev_b32 v16, 7, v13
        v_lshl_add_u32 v16, v15, 4, v16
        v_lshl_add_u32 v16, v11, 3, v16""")
        for d in range(2):
            A(f"v_xor_b32 v17, {d}, v14\nv_lshl_add_u32 v{V_VR+d}, v17, 6, v16")
        A("""v_mul_u32_u24 v16, 896, v13
        v_lshl_add_u32 v15, v8, 1, v11
        v_lshl_add_u32 v16, v15, 4, v16
        v_lshl_add_u32 v16, v12, 3, v16""")
        for p in range(2):
            A(f"v_xor_b32 v17, {p}, v14\nv_lshl_add_u32 v{V_OR+p}, v17, 6, v16")
        A(f"s_cmp_lg_u32 s{S_H}, 0\ns_cbranch_scc1 L_nononce")
        A(f"s_cmp_lg_u32 s{S_W}, 0\ns_cbranch_scc1 L_nononce")
        A(f"""s_memrealtime s[56:57]
        s_waitcnt lgkmcnt(0)
        s_or_b32 s56, s56, 1
        v_mov_b32 v13, s56
        v_mov_b32 v14, s{S_B}
        v_lshlrev_b32 v14, 2, v14
        v_add_u32 v14, 128, v14
        s_mov_b64 s[{S_EX}:{S_EX+1}], exec
        s_mov_b64 exec, 1
        global_store_dword v14, v13, s[{P+12}:{P+13}] sc1
        s_mov_b64 exec, s[{S_EX}:{S_EX+1}]
        L_nononce:""")

    def build(self):
        o = self.o
        X = [Tile("X", i) for i in range(7)]
        W = [Tile("W", i) for i in range(14)]
        K = [Tile("K", i) for i in range(16)]
        V = [Tile("V", i) for i in range(16)]
        O = [Tile("O", i) for i in range(16)]
        steps = []

        def M(D, C, Afr, B, Bfr=None, dn=16, dacc=False, bacc=False):
            return dict(D=D, C=C, A=Afr, B=B, Bfr=Bfr, dacc=dacc, bacc=bacc)

        xbuf = 0
        for t in range(14):
            mf = []
            for sp in range(2):
                s = 2 * t + sp
                Xt = X[s // 4]
                bf = self.fragX(Xt, s % 4)
                bf.dst = A_XB + 4 * (s & 3)
                order = range(8)
                for dt in order:
                    mf.append(M(V_P + 16 * dt, None if s == 0 else V_P + 16 * dt, self.fragW(W[t], sp, dt), bf.dst, Bfr=bf if dt == 0 else None, bacc=True))
            if t == 13:
                f0 = [m for m in mf[:8]]
                f1 = [m for m in mf[8:]]
                mf = []
                for dt in range(8):
                    mf += [f0[dt], f1[dt]]
                b0, b1 = f0[0]["Bfr"], f1[0]["Bfr"]
                mf[0]["Bfr"], mf[1]["Bfr"] = b0, b1
            steps.append(dict(name=f"W{t}", mf=mf, fill=[], tiles=[W[t], X[(2 * t) // 4]]))
        for t in range(16):
            S = V_S[t & 1]
            mf = [M(S, None if sig == 0 else S, self.fragK(K[t], sig), A_Q + 4 * sig, bacc=True) for sig in range(16)]
            steps.append(dict(name=f"K{t}", mf=mf, fill=[], tiles=[K[t]]))
        def vstep(c, u):
            OA = V_OA[c & 1]
            mf = []
            for tau in range(8):
                kt, beta = 4 * u + (tau >> 1), tau & 1
                for dl in range(2):
                    first = (u == 0 and tau == 0)
                    mf.append(M(OA + 16 * dl, None if first else OA + 16 * dl, self.fragV(V[4 * c + u], tau, dl), V_P + 8 * kt + 4 * beta))
            return dict(name=f"V{c}_{u}", mf=mf, fill=[], tiles=[V[4 * c + u]])

        def ostep(c, kap):
            mf = []
            for nt in range(14):
                first = (c == 0 and kap == 0)
                mf.append(M(A_OUT + 16 * nt, None if first else A_OUT + 16 * nt, self.fragO(O[4 * c + kap], nt), V_OPK + 4 * kap, dacc=True))
            return dict(name=f"O{c}_{kap}", mf=mf, fill=[], tiles=[O[4 * c + kap]])

        for u in range(4):
            steps.append(vstep(0, u))
        for c in range(1, 4):
            if self.o.vorder == "alt" :
                seq = "V0 O0 V1 O1 V2 O2 O3 V3"
            elif self.o.vorder == "run":
                seq = "V0 V1 V2 V3 O0 O1 O2 O3" if c < 3 else "V0 V1 O0 O1 O2 O3 V2 V3"
            elif self.o.vorder == "run2":
                seq = "V0 V1 O0 O1 V2 O2 O3 V3" if c < 3 else "V0 V1 O0 O1 O2 O3 V2 V3"
            for e in seq.split():
                steps.append(vstep(c, int(e[1])) if e[0] == "V" else ostep(c - 1, int(e[1])))
        mf = []
        for nt in range(14):
            for kap in range(4):
                mf.append(M(A_OUT + 16 * nt, A_OUT + 16 * nt, self.fragO(O[12 + kap], nt), V_OPK + 4 * kap, dacc=True))
        steps.append(dict(name="O3", mf=mf, fill=[], tiles=[O[12], O[13], O[14], O[15]]))

        for si, st in enumerate(steps):
            st["idx"] = si
            for m in st["mf"]:
                for fr in (m["A"], m["Bfr"]):
                    if fr is not None:
                        T = fr.tile
                        T.first = si if T.first is None else T.first
                        T.last = si
        self.steps, self.X, self.W, self.K, self.V, self.O = steps, X, W, K, V, O
        return steps

    def plan_dma(self):
        X, W, K, V, O = self.X, self.W, self.K, self.V, self.O
        steps = self.steps
        o = self.o
        LW, LX = o.lw, o.lx
        ksteps = [int(x) for x in o.ksteps.split(",")] if o.ksteps else []
        initA = [X[0], W[0], W[1]]
        order = []
        seen = set(t.name for t in initA)

        def add(T, d):
            if T.name not in seen:
                seen.add(T.name)
                order.append((T, d))
        kq = list(enumerate(ksteps))
        for s in range(-1, 14):
            for t in range(14):
                if t - LW <= s:
                    add(W[t], s)
            for x in range(7):
                if 2 * x - LX <= s:
                    add(X[x], s)
            for i, ks in kq:
                if ks <= s:
                    add(K[i], s)
        late = []
        for st in steps:
            for T in st["tiles"]:
                if T.name not in seen and T not in late:
                    la = {"K": o.lak, "V": o.lav, "O": o.lao}[T.kind]
                    late.append(T)
                    T.d = T.first - la
                    if T.kind == "O" and T.idx >= 12:
                        T.d = T.first - o.lao - o.lao3 * (15 - T.idx) - 1
        for lst in (K, V, O):
            prev = -100
            for T in lst:
                if hasattr(T, "d"):
                    T.d = max(T.d, prev)
                    prev = T.d
        late.sort(key=lambda T: (T.d, T.first, T.idx))
        for T in late:
            add(T, max(T.d, 0))
        order.sort(key=lambda x: x[1])
        free = list(range(NSLOT))
        for T in initA:
            T.slot, T.issue = free.pop(0), -2
        self.initA = initA
        self.initB = []
        q = list(order)
        while q and q[0][1] < 0 and free:
            T, d = q.pop(0)
            T.slot, T.issue = free.pop(0), -1
            self.initB.append(T)
        allt = initA + [t for t, _ in order]
        for s, st in enumerate(steps):
            for T in allt:
                if T.slot is not None and T.last == s - 1:
                    free.append(T.slot)
            st["dma"] = []
            n = 0
            while q and free and n < o.dmarate and q[0][1] <= s:
                T, d = q.pop(0)
                T.slot = free.pop(0)
                T.issue = s
                st["dma"].append(T)
                n += 1
        assert not q
        for lst in (X, W, V, O):
            for a, b in zip(lst, lst[1:]):
                assert allt.index(a) < allt.index(b), (a, b)
        for T in allt:
            need = max(T.first - 1, 0)
            assert T.issue < need or T.issue < 0, f"{T} issued at {T.issue} but needed at boundary {need}"
        if self.o.verbose:
            for T in allt:
                print(T.name, "slot", T.slot, "issue", T.issue, "first", T.first, "last", T.last, file=sys.stderr)

    def touch_xw(self):
        A = self
        L = V_T2
        A(f"""s_and_b32 s{S_T}, s{S_B}, 7
        s_lshl_b32 s{S_T}, s{S_T}, 2
        s_lshl_b32 s{S_T2}, s{S_W}, 7
        s_add_u32 s{S_T}, s{S_T}, s{S_T2}
        v_lshrrev_b32 v20, 4, v{L}
        v_lshlrev_b32 v20, 5, v20
        v_lshrrev_b32 v21, 2, v{L}
        v_and_b32 v21, 3, v21
        v_add3_u32 v20, v20, v21, s{S_T}
        v_lshlrev_b32 v20, 13, v20
        v_and_b32 v21, 3, v{L}
        v_lshl_add_u32 v20, v21, 7, v20""")
        self.vmem(f"buffer_load_dword v{V_T0}, v20, s[{SRD_W}:{SRD_W+3}], 0 offen", "TCH")
        A(f"""s_and_b32 s{S_T}, s{S_H}, 3
        s_mul_i32 s{S_T}, s{S_T}, 28
        v_cmp_le_u32 vcc, 28, v{L}
        v_subrev_u32 v21, 28, v{L}
        v_cndmask_b32 v22, v{L}, v21, vcc
        v_add_u32 v22, s{S_T}, v22
        v_mul_u32_u24 v22, 896, v22
        v_cndmask_b32 v21, 0, 1, vcc
        s_lshl_b32 s{S_T2}, s{S_W}, 1
        v_add_u32 v21, s{S_T2}, v21
        v_cmp_gt_u32 vcc, 7, v21
        v_lshl_add_u32 v22, v21, 7, v22
        v_mov_b32 v23, 0x40000000
        v_cndmask_b32 v22, v23, v22, vcc
        v_cmp_gt_u32 vcc, 56, v{L}
        s_nop 1
        v_cndmask_b32 v22, v23, v22, vcc""")
        self.vmem(f"buffer_load_dword v{V_T1}, v22, s[{SRD_X}:{SRD_X+3}], 0 offen", "TCH")

    def touch_wo_instrs(self):
        L = V_T2
        R = V_XD + 2
        f = [f"s_and_b32 s{S_T}, s{S_B}, 7", f"s_lshl_b32 s{S_T2}, s{S_W}, 3", f"s_add_u32 s{S_T}, s{S_T}, s{S_T2}",
             f"v_lshlrev_b32 v{R}, 5, v{L}", f"v_add_u32 v{R}, s{S_T}, v{R}", f"v_lshlrev_b32 v{R}, 7, v{R}"]
        return f, f"buffer_load_dword v{V_XD+3}, v{R}, s[{SRD_O}:{SRD_O+3}], 0 offen"

    def softmax_fill(self, t):
        S = V_S[t & 1]
        f = []
        if t == 0:
            f.append(f"v_max3_f32 v{V_T0}, v{S}, v{S+1}, v{S+2}")
            for i in range(3, 15, 2):
                f.append(f"v_max3_f32 v{V_T0}, v{V_T0}, v{S+i}, v{S+i+1}")
            f.append(f"v_max_f32 v{V_T0}, v{V_T0}, v{S+15}")
            f.append(f"v_mov_b32 v{V_T1}, v{V_T0}")
            f.append("s_nop 1")
            f.append(f"v_permlane32_swap_b32 v{V_T0}, v{V_T1}")
            f.append(f"v_max_f32 v{V_T0}, v{V_T0}, v{V_T1}")
            f.append(f"v_mul_f32 v{V_T0}, s{S_C}, v{V_T0}")
            f.append(f"v_ceil_f32 v{V_T0}, v{V_T0}")
            f.append(f"v_sub_f32 v{V_NM}, 0, v{V_T0}")
            f.append(f"v_mov_b32 v{V_L}, 0")
        for i in range(16):
            f.append(f"v_fma_f32 v{V_PT+i}, v{S+i}, s{S_C}, v{V_NM}")
        for i in range(16):
            f.append(f"v_exp_f32 v{V_PT+i}, v{V_PT+i}")
        f.append(f"v_add_f32 v{V_LT}, v{V_PT}, v{V_PT+1}")
        f.append(f"v_add_f32 v{V_LT2}, v{V_PT+2}, v{V_PT+3}")
        for i in range(4, 16, 2):
            f.append(f"v_add_f32 v{V_LT}, v{V_LT}, v{V_PT+i}")
            f.append(f"v_add_f32 v{V_LT2}, v{V_LT2}, v{V_PT+i+1}")
        f.append(f"v_add_f32 v{V_LT}, v{V_LT}, v{V_LT2}")
        if t > 0 and not self.o.norare:
            f.append(f"v_cmp_ngt_f32 vcc, s{S_T3}, v{V_LT}")
            f.append(f"s_cbranch_vccnz L_rare{t}\nL_back{t}:")
            self.rare_sites.append(t)
        f.append(f"v_add_f32 v{V_L}, v{V_L}, v{V_LT}")
        for k in range(8):
            f.append(f"v_cvt_pk_bf16_f32 v{V_P + 8*t + k}, v{V_PT+2*k}, v{V_PT+2*k+1}")
        return f

    def rare_code(self):
        A = self
        for t in self.rare_sites:
            A(f"L_rare{t}:\ns_call_b64 s[{S_RET}:{S_RET+1}], L_rare_s{t&1}\ns_branch L_back{t}")
        for par in range(2):
            S = V_S[par]
            A(f"L_rare_s{par}:")
            A(f"v_max3_f32 v{V_T0}, v{S}, v{S+1}, v{S+2}")
            for i in range(3, 15, 2):
                A(f"v_max3_f32 v{V_T0}, v{V_T0}, v{S+i}, v{S+i+1}")
            A(f"v_max_f32 v{V_T0}, v{V_T0}, v{S+15}")
            A(f"v_mov_b32 v{V_T1}, v{V_T0}\ns_nop 1\nv_permlane32_swap_b32 v{V_T0}, v{V_T1}")
            A(f"v_max_f32 v{V_T0}, v{V_T0}, v{V_T1}")
            A(f"v_mul_f32 v{V_T0}, s{S_C}, v{V_T0}\nv_ceil_f32 v{V_T0}, v{V_T0}")
            A(f"v_max_f32 v{V_T0}, v{V_T0}, -v{V_NM}")
            A(f"v_add_f32 v{V_T1}, v{V_T0}, v{V_NM}")
            A(f"v_exp_f32 v{V_T1}, -v{V_T1}")
            A(f"v_sub_f32 v{V_NM}, 0, v{V_T0}")
            A(f"v_mul_f32 v{V_L}, v{V_L}, v{V_T1}")
            for r in range(128):
                A(f"v_lshlrev_b32 v{V_LT}, 16, v{V_P+r}\nv_and_b32 v{V_LT2}, 0xffff0000, v{V_P+r}")
                A(f"v_mul_f32 v{V_LT}, v{V_LT}, v{V_T1}\nv_mul_f32 v{V_LT2}, v{V_LT2}, v{V_T1}")
                A(f"v_cvt_pk_bf16_f32 v{V_P+r}, v{V_LT}, v{V_LT2}")
            for i in range(16):
                A(f"v_fma_f32 v{V_PT+i}, v{S+i}, s{S_C}, v{V_NM}")
            for i in range(16):
                A(f"v_exp_f32 v{V_PT+i}, v{V_PT+i}")
            A(f"s_nop 0\nv_add_f32 v{V_LT}, v{V_PT}, v{V_PT+1}")
            for i in range(2, 16):
                A(f"v_add_f32 v{V_LT}, v{V_LT}, v{V_PT+i}")
            A(f"s_setpc_b64 s[{S_RET}:{S_RET+1}]")

    def qcvt_fill(self, dt):
        f = []
        D = V_P + 16 * dt
        for k in range(8):
            f.append(f"v_cvt_pk_bf16_f32 v{V_PT + (k + 8*(dt&1))}, v{D+2*k}, v{D+2*k+1}")
        for k in range(8):
            f.append(f"v_accvgpr_write_b32 a{A_Q + 8*dt + k}, v{V_PT + (k + 8*(dt&1))}")
        return f

    def ofin_fill(self, c):
        OA = V_OA[c & 1]
        f = []
        for i in range(32):
            f.append(f"v_mul_f32 v{OA+i}, v{OA+i}, v{V_RI}")
        for k in range(16):
            f.append(f"v_cvt_pk_bf16_f32 v{V_OPK+k}, v{OA+2*k}, v{OA+2*k+1}")
        return f

    def lfin(self):
        return [f"v_mov_b32 v{V_T1}, v{V_L}", "s_nop 1", f"v_permlane32_swap_b32 v{V_L}, v{V_T1}", "s_nop 0",
                f"v_add_f32 v{V_L}, v{V_L}, v{V_T1}", f"v_rcp_f32 v{V_RI}, v{V_L}", "s_nop 0"]

    def emit_main(self):
        o = self.o
        steps = self.steps
        self.rare_sites = []
        mfs = []
        for st in steps:
            for k, m in enumerate(st["mf"]):
                m["step"], m["k"] = st["idx"], k
                mfs.append(m)
        rq = []
        ring = 0
        for gi, m in enumerate(mfs):
            m["gi"] = gi
            if m["Bfr"] is not None:
                fr = m["Bfr"]
                fr.tag = f"B{gi}"
                rq.append((gi, fr, fr.dst))
            fr = m["A"]
            fr.tag = f"A{gi}"
            fr.dst = A_RING + 4 * (ring % NRING)
            fr.ringidx = ring
            ring += 1
            rq.append((gi, fr, fr.dst))
        self.rqi = 0
        PF = o.pf

        def pump(cur_gi, cur_step):
            while self.rqi < len(rq):
                gi, fr, dst = rq[self.rqi]
                if gi > cur_gi + PF:
                    break
                if max(fr.tile.first - 1, 0) > cur_step:
                    break
                if fr.tag.startswith("B") and gi - cur_gi > (8 if mfs[gi]["step"] < 13 else 0) and False:
                    break
                self.emit_frag(fr, dst)
                self.rqi += 1

        name2step = {st["name"]: st for st in steps}
        for t in range(16):
            f = self.softmax_fill(t)
            if t < 15:
                name2step[f"K{t+1}"]["fill"] = ("late", 2, f)
            else:
                name2step["V0_0"]["fill"] = ("late", 2, f + self.lfin())
        for c in range(3):
            name2step[f"V{c+1}_0"]["fill"] = ("late", 3, self.ofin_fill(c))

        stop = o.stop
        for st in steps:
            s = st["idx"]
            need = [T.name for T in (self.X + self.W + self.K + self.V + self.O) if max(T.first - 1, 0) == s]
            if s == 0:
                need += [T.name for T in (self.X + self.W) if T.first == 0]
            if need:
                self.wait_vm(set(need))
            self("s_barrier")
            if o.stamps and (st["name"] in o.stampat or s in o.stampidx):
                self.stamp()
            cm = f"; ---- step {s} {st['name']} dma={st['dma']}"
            self.ins.append(cm)
            if stop and st["name"] == stop:
                return False
            if o.touch and st["name"] == o.wotouch:
                pre, ld = self.touch_wo_instrs()
                for l in pre:
                    self(l)
                self.vmem(ld, "TCH")
            if "pre" in st:
                self("s_nop 7\ns_nop 3")
                for l in st["pre"]:
                    self(l)
            if st["name"] == "O3":
                self("s_nop 7\ns_nop 3")
                for l in self.ofin_fill(3):
                    self(l)
                self("s_nop 1")
            fillq = []
            dmaq = []
            for T in st["dma"]:
                dmaq += [(txt, isv, T.name) for txt, isv in self.dma_instrs(T)]
            mode = st["fill"]
            fl_start, fl = (mode[1], list(mode[2])) if mode else (0, [])
            n = len(st["mf"])
            ndma0 = len([1 for x in dmaq if x[1]])
            if s == 0:
                pump(st["mf"][0]["gi"] - 1, s)
            for k, m in enumerate(st["mf"]):
                gi = m["gi"]
                pump(gi, s) if k == 0 else None
                tags = {m["A"].tag}
                if m["Bfr"] is not None:
                    tags.add(m["Bfr"].tag)
                self.wait_lg(tags)
                D = ar(m["D"], 16) if m["dacc"] else vr(m["D"], 16)
                C = "0" if m["C"] is None else D
                B = ar(m["B"], 4) if m["bacc"] else vr(m["B"], 4)
                if not o.nomfma:
                    self(f"v_mfma_f32_32x32x16_bf16 {D}, {ar(m['A'].dst, 4)}, {B}, {C}")
                pump(gi + 1, s)
                while dmaq and (not o.spread or len([1 for x in dmaq if x[1]]) > (ndma0 * (n - 1 - k)) // n):
                    txt, isv, tag = dmaq.pop(0)
                    if not isv:
                        self(txt)
                        txt, isv, tag = dmaq.pop(0)
                    self.vmem(txt, tag)
                    if not o.spread:
                        break
                if fl and k >= fl_start:
                    gaps_left = n - k
                    cnt = -(-len(fl) // gaps_left)
                    for _ in range(cnt):
                        self(fl.pop(0))
                if st["name"] == "W13" and k >= 5 and k % 2 == 1:
                    dt = (k - 5) // 2
                    for l in self.qcvt_fill(dt):
                        self(l)
                if st["name"] == "O3" and k >= 7 and k % 4 == 3:
                    self.out_tile((k - 7) // 4)
            while dmaq:
                txt, isv, tag = dmaq.pop(0)
                if isv:
                    self.vmem(txt, tag)
                else:
                    self(txt)
            assert not fl
            if st["name"] == "W13":
                self("s_nop 7\ns_nop 3")
                for dt in range(6, 8):
                    for l in self.qcvt_fill(dt):
                        self(l)
                self("s_nop 1")
            if st["name"] == "O3":
                self("s_nop 7\ns_nop 3")
                self.out_tile(13)
        return True

    def out_tile(self, nt):
        base = 16 * (nt & 3)
        pk = 64 + 8 * (nt & 3)
        for i in range(16):
            self(f"v_accvgpr_read_b32 v{base+i}, a{A_OUT + 16*nt + i}")
        for k in range(8):
            self(f"v_cvt_pk_bf16_f32 v{pk+k}, v{base+2*k}, v{base+2*k+1}")
        for beta in range(2):
            g = 2 * nt + beta
            self(f"s_mov_b32 s{S_TOFF}, {g*1024}")
            self.vmem(f"buffer_store_dwordx4 v[{pk+4*beta}:{pk+4*beta+3}], v{V_XD}, s[{SRD_P}:{SRD_P+3}], s{S_TOFF} offen sc1", "PST")

    def tail_setup(self):
        A = self
        L = V_T2
        A(f"""s_mul_i32 s{S_T}, s{S_H}, {PART_H}
        s_mul_i32 s{S_T2}, s{S_W}, {PART_T}
        s_add_u32 s{S_T}, s{S_T}, s{S_T2}
        v_lshlrev_b32 v{V_XD}, 4, v{L}
        v_add_u32 v{V_XD}, s{S_T}, v{V_XD}
        v_and_b32 v{V_XD+1}, 31, v{L}
        s_lshl_b32 s{S_T2}, s{S_W}, 5
        v_add_u32 v{V_XD+1}, s{S_T2}, v{V_XD+1}
        v_cmp_gt_u32 vcc, 112, v{V_XD+1}
        v_mov_b32 v{V_XD+2}, 0x40000000
        v_cndmask_b32 v{V_XD}, v{V_XD+2}, v{V_XD}, vcc""")

    def tail(self):
        A = self
        L = V_T2
        P = S_PTR
        A("; ---- tail")
        A(f"s_waitcnt vmcnt(0)\ns_barrier")
        self.stamp()
        A(f"s_cmp_lg_u32 s{S_W}, 0\ns_cbranch_scc1 L_polled")
        A(f"""v_mov_b32 v1, s{S_B}
        v_lshlrev_b32 v1, 2, v1
        v_add_u32 v1, 128, v1
        s_mov_b32 s{S_CNT}, 0
        L_nonce:
        global_load_dword v2, v1, s[{P+12}:{P+13}] sc1
        s_add_u32 s{S_CNT}, s{S_CNT}, 1
        s_waitcnt vmcnt(0)
        v_readfirstlane_b32 s{S_NONCE}, v2
        s_cmp_gt_u32 s{S_CNT}, 100000
        s_cbranch_scc1 L_givenup
        s_cmp_eq_u32 s{S_NONCE}, 0
        s_cbranch_scc1 L_nonce
        v_mov_b32 v3, s{S_NONCE}
        v_mov_b32 v4, s{S_H}
        v_lshlrev_b32 v4, 7, v4
        v_lshlrev_b32 v5, 7, v{L}
        s_mov_b64 s[{S_EX}:{S_EX+1}], exec
        s_mov_b64 exec, 1
        buffer_store_dword v3, v4, s[{SRD_F}:{SRD_F+3}], 0 offen sc1
        s_mov_b64 exec, 0xffff
        s_mov_b32 s{S_CNT}, 0
        L_poll:
        buffer_load_dword v6, v5, s[{SRD_F}:{SRD_F+3}], 0 offen sc1
        s_add_u32 s{S_CNT}, s{S_CNT}, 1
        s_waitcnt vmcnt(0)
        v_cmp_ne_u32 vcc, v6, v3
        s_cmp_gt_u32 s{S_CNT}, 100000
        s_cbranch_scc1 L_pdone
        s_cbranch_vccnz L_poll
        L_pdone:
        s_mov_b64 exec, s[{S_EX}:{S_EX+1}]
        L_givenup:
        L_polled:
        s_barrier""")
        self.stamp()
        A(f"""s_and_b32 s{S_T}, s{S_H}, 3
        s_lshr_b32 s{S_T2}, s{S_H}, 2
        s_mul_i32 s{S_T2}, s{S_T2}, 7
        s_add_u32 s{S_T2}, s{S_T2}, s{S_W}
        s_mul_i32 s{S_T3}, s{S_T}, {PART_T}
        s_lshl_b32 s54, s{S_T2}, 10
        s_add_u32 s54, s54, s{S_T3}
        v_lshlrev_b32 v1, 4, v{L}
        v_add_u32 v1, s54, v1
        v_and_b32 v2, 31, v{L}
        s_lshl_b32 s55, s{S_T}, 5
        v_add_u32 v2, s55, v2
        v_cmp_gt_u32 vcc, 112, v2
        v_mov_b32 v3, 0x40000000
        v_cndmask_b32 v1, v3, v1, vcc
        v_mul_u32_u24 v4, 896, v2
        v_lshrrev_b32 v5, 5, v{L}
        v_lshl_add_u32 v4, v5, 4, v4
        s_lshl_b32 s55, s{S_T2}, 5
        v_add_u32 v4, s55, v4
        v_cndmask_b32 v4, v3, v4, vcc
        s_mov_b32 s58, 0x00003f80
        s_mov_b32 s59, 0x3f800000""")
        for un in range(2):
            if un == 1:
                A(f"s_cmp_eq_u32 s{S_W}, 3\ns_cbranch_scc1 L_one_unit")
            for hh in range(16):
                A(f"s_mov_b32 s{S_TOFF}, {hh*PART_H + un*4096}")
                r = 16 + 64 * un + 4 * hh
                A(f"buffer_load_dwordx4 v[{r}:{r+3}], v1, s[{SRD_P}:{SRD_P+3}], s{S_TOFF} offen sc1")
        def reduce(un, nyounger):
            acc = 144 + 8 * un
            for hh in range(16):
                r = 16 + 64 * un + 4 * hh
                A(f"s_waitcnt vmcnt({nyounger + 15 - hh})")
                for k in range(4):
                    if hh == 0:
                        A(f"v_dot2_f32_bf16 v{acc+2*k}, v{r+k}, s58, 0")
                        A(f"v_dot2_f32_bf16 v{acc+2*k+1}, v{r+k}, s59, 0")
                    else:
                        A(f"v_dot2_f32_bf16 v{acc+2*k}, v{r+k}, s58, v{acc+2*k}")
                        A(f"v_dot2_f32_bf16 v{acc+2*k+1}, v{r+k}, s59, v{acc+2*k+1}")
            A("s_nop 2")
            for k in range(4):
                A(f"v_cvt_pk_bf16_f32 v{160+4*un+k}, v{acc+2*k}, v{acc+2*k+1}")
            A(f"buffer_store_dwordx4 v[{160+4*un}:{163+4*un}], v4, s[{SRD_OUT}:{SRD_OUT+3}], 0 offen offset:{128*un}")
        reduce(0, 16)
        reduce(1, 1)
        A("s_branch L_fin\nL_one_unit:")
        reduce(0, 0)
        A("L_fin:")

    def dump_regs(self, kind, start, n):
        A = self
        P = S_PTR
        A("s_waitcnt vmcnt(0) lgkmcnt(0)\ns_nop 7\ns_nop 7")
        A(f"""s_lshl_b32 s{S_T}, s2, 2
        s_add_u32 s{S_T}, s{S_T}, s{S_W}
        s_mul_i32 s{S_T}, s{S_T}, {n*256}
        s_add_u32 s{S_T}, s{S_T}, {WS_DBG}
        s_add_u32 s60, s{P+14}, s{S_T}
        s_addc_u32 s61, s{P+15}, 0
        s_mov_b32 s62, {n*256}
        s_mov_b32 s63, 0x20000
        v_lshlrev_b32 v{V_T0}, 2, v{V_T2}""")
        for i in range(n):
            A(f"s_mov_b32 s{S_TOFF}, {i*256}")
            if kind == "a":
                A(f"buffer_store_dword a{start+i}, v{V_T0}, s[60:63], s{S_TOFF} offen")
            else:
                A(f"buffer_store_dword v{start+i}, v{V_T0}, s[60:63], s{S_TOFF} offen")
        A("s_waitcnt vmcnt(0)")

    def write_stamps(self):
        if not self.o.stamps:
            return
        A = self
        P = S_PTR
        n = self.nstamp
        R = self.STAMP_REGS
        A(f"""s_waitcnt lgkmcnt(0)
        s_mul_i32 s{S_T}, s2, {8*self.o.nstamps}
        s_add_u32 s60, s{P+14}, s{S_T}
        s_addc_u32 s61, s{P+15}, 0
        s_add_u32 s60, s60, {WS_STAMP}
        s_addc_u32 s61, s61, 0
        s_cmp_lg_u32 s{S_W}, 0
        s_cbranch_scc1 L_nostamp
        s_mov_b64 exec, 1
        v_mov_b32 v1, 0""")
        assert n <= self.o.nstamps, n
        if self.o.dbgstamps:
            k0, k1 = R[0], R[n - 1]
            A(f"v_mov_b32 v2, s{k1}\nglobal_atomic_umax v1, v2, s[{P+12}:{P+13}]")
            A(f"s_not_b32 s{S_T}, s{k0}\nv_mov_b32 v2, s{S_T}\nglobal_atomic_umax v1, v2, s[{P+12}:{P+13}] offset:4")
            A(f"s_cmp_lg_u32 s2, {self.o.dbgwg}\ns_cbranch_scc1 L_nostamp")
            for i in range(1, n):
                A(f"s_sub_u32 s{S_T}, s{R[i]}, s{k0}\nv_mov_b32 v2, s{S_T}\nglobal_store_dword v1, v2, s[{P+12}:{P+13}] offset:{4*(i+1)}\ns_nop 1")
            A("s_waitcnt vmcnt(0)\nL_nostamp:")
            return
        A("v_mov_b32 v3, 0")
        for i in range(self.o.nstamps):
            k = R[min(i, n - 1)]
            A(f"v_mov_b32 v2, s{k}\nglobal_store_dwordx2 v1, v[2:3], s[60:61] offset:{8*i}\ns_nop 1")
        A("s_waitcnt vmcnt(0)\nL_nostamp:")

    def generate(self):
        o = self.o
        self.build()
        self.plan_dma()
        self.prologue()
        if "P0" in o.stampat: self.stamp()
        for T in self.initA:
            self.emit_dma(T)
        if "P1" in o.stampat: self.stamp()
        if o.touch:
            self.touch_xw()
        self.prologue2()
        for T in self.initB:
            self.emit_dma(T)
        if "P2" in o.stampat: self.stamp()
        self(f"s_mov_b32 s{S_T3}, 0x47800000")
        done = self.emit_main_wrap()
        if done:
            self.tail()
            if o.stamps:
                self("s_waitcnt vmcnt(0)")
                self.stamp()
        self.write_stamps()
        self("L_end:\ns_endpgm")
        self.rare_code()
        self("L_code_end:")
        return self.finish()

    def emit_main_wrap(self):
        o = self.o
        steps = self.steps
        for st in steps:
            if st["name"] == "K1":
                st["hook"] = True
        done = self._emit_with_hooks()
        if not done:
            kind, start, n = o.dump
            self.dump_regs(kind, start, n)
        return done

    def _emit_with_hooks(self):
        done = self.emit_main()
        if done:
            out = []
            save = self.ins
            self.ins = []
            self.tail_setup()
            setup = self.ins
            self.ins = save
            for l in self.ins:
                out.append(l)
                if l.startswith("; ---- step") and " K1 " in l:
                    out += setup
            self.ins = out
        return done

    def finish(self):
        ins = fix_hazards(self.ins, self.o.verbose)
        hdr = []
        hdr.append("; @launch grid=(256,1,1) block=(256,1,1) lds=163840")
        hdr.append('.amdgcn_target "amdgcn-amd-amdhsa--gfx950"')
        hdr.append(".text")
        hdr.append(f".globl {NAME}\n.p2align 8\n.type {NAME},@function\n{NAME}:")
        body = "\n".join(ins)
        nbytes = estimate_size(ins)
        ntouch = min(64, -(-(-(-nbytes // 128)) // 32))
        body = body.replace("CODE_TOUCH_N", str(ntouch))
        tail = f""".section .rodata,"a"
.p2align 6
.amdhsa_kernel {NAME}
  .amdhsa_next_free_vgpr 512
  .amdhsa_next_free_sgpr 102
  .amdhsa_accum_offset 256
  .amdhsa_group_segment_fixed_size 0
  .amdhsa_kernarg_size 64
  .amdhsa_user_sgpr_count 2
  .amdhsa_user_sgpr_kernarg_segment_ptr 1
  .amdhsa_system_sgpr_workgroup_id_x 1
.end_amdhsa_kernel"""
        if self.o.verbose:
            print("code bytes ~", nbytes, "touch lanes", ntouch, file=sys.stderr)
        return "\n".join(hdr) + "\n" + body + "\n" + tail + "\n"


REG_RE = re.compile(r"(-?)\b([vas])(?:\[(\d+):(\d+)\]|(\d+))(?![\w\[])")


def regs_of(op):
    out = []
    for m in REG_RE.finditer(op):
        k = m.group(2)
        if m.group(3) is not None:
            out += [(k, i) for i in range(int(m.group(3)), int(m.group(4)) + 1)]
        else:
            out.append((k, int(m.group(5))))
    return out


TRANS = ("v_exp_f32", "v_log_f32", "v_rcp_f32", "v_rsq_f32", "v_sqrt_f32")


def parse(l):
    l0 = l.split(";")[0].strip()
    if not l0 or l0.endswith(":") or l0.startswith("."):
        return None
    parts = l0.split(None, 1)
    mn = parts[0]
    ops = [x.strip() for x in parts[1].split(",")] if len(parts) > 1 else []
    d = dict(mn=mn, w=set(), r=set(), c=set(), kind="other")
    if mn.startswith("v_mfma"):
        d["kind"] = "mfma"
        d["w"] = set(regs_of(ops[0]))
        d["ab"] = set(regs_of(ops[1])) | set(regs_of(ops[2]))
        d["c"] = set(regs_of(ops[3]))
        d["r"] = d["ab"] | d["c"]
    elif mn.startswith("v_"):
        d["kind"] = "valu"
        if mn.startswith("v_cmp"):
            d["w"] = set(regs_of(ops[0])) | ({("s", "vcc")} if ops[0] == "vcc" else set())
            d["r"] = set(x for o in ops[1:] for x in regs_of(o))
        elif mn.startswith("v_permlane32_swap") or mn.startswith("v_permlane16_swap"):
            d["w"] = set(regs_of(ops[0])) | set(regs_of(ops[1]))
            d["r"] = set(d["w"])
            d["perm"] = True
        elif mn.startswith("v_readfirstlane") or mn.startswith("v_readlane"):
            d["w"] = set(regs_of(ops[0]))
            d["r"] = set(x for o in ops[1:] for x in regs_of(o))
            d["rfl"] = True
        else:
            d["w"] = set(regs_of(ops[0]))
            d["r"] = set(x for o in ops[1:] for x in regs_of(o))
            if "vcc" in ops[1:]:
                d["r"].add(("s", "vcc"))
            if mn.startswith("v_fmac") or mn.startswith("v_dot2c"):
                d["r"] |= d["w"]
        d["trans"] = mn.split("_e")[0] in TRANS or mn in TRANS
    elif mn.startswith("ds_read"):
        d["kind"] = "ds"
        d["w"] = set(regs_of(ops[0]))
        d["r"] = set(regs_of(ops[1].split()[0]))
    elif mn.startswith("ds_write"):
        d["kind"] = "ds"
        d["r"] = set(x for o in ops for x in regs_of(o.split()[0]))
    elif mn.startswith("buffer_") or mn.startswith("global_"):
        d["kind"] = "vmem"
        allr = [regs_of(o.split()[0]) if o else [] for o in ops]
        if "store" in mn or "atomic" in mn:
            d["r"] = set(x for a in allr for x in a)
            d["store"] = True
            big = "x4" in mn or "x3" in mn
            if big:
                src = allr[0] if mn.startswith("buffer_") else allr[1]
                d["stdata"] = set(src)
        elif " lds" in l0:
            d["r"] = set(x for a in allr for x in a)
            d["dma"] = True
        else:
            d["w"] = set(allr[0])
            d["r"] = set(x for a in allr[1:] for x in a)
    elif mn.startswith("s_"):
        d["kind"] = "salu"
        if mn == "s_nop":
            d["nop"] = int(ops[0]) + 1
        if ops and (ops[0] == "m0"):
            d["m0w"] = True
        if ops and not mn.startswith("s_cmp") and not mn.startswith("s_cbranch") and not mn.startswith("s_waitcnt"):
            d["w"] = set(regs_of(ops[0]))
        d["r"] = set(x for o in ops[1:] for x in regs_of(o))
    return d


def fix_hazards(ins, verbose=False):
    out = []
    last = {}
    pos = 0
    inserted = 0
    mf_w, mf_c, valu_w, trans_w, valu_sw, st_data = {}, {}, {}, {}, {}, {}
    m0w = -100
    for l in ins:
        d = parse(l)
        if d is None:
            out.append(l)
            continue
        need = 0

        def req(table, regs, n):
            nonlocal need
            for r in regs:
                if r in table:
                    need = max(need, table[r] + n + 1 - pos)
        k = d["kind"]
        if k == "mfma":
            req(valu_w, d["r"], 2)
            req(mf_w, d["ab"], 12)
            for r in d["c"]:
                if r in mf_w and d["c"] != mf_w_set.get(r, None):
                    need = max(need, mf_w[r] + 10 + 1 - pos)
        elif k == "valu":
            req(mf_w, d["r"] | d["w"], 12)
            req(mf_c, d["w"], 7)
            if not d.get("trans"):
                req(trans_w, d["r"], 1)
            else:
                req(trans_w, d["r"], 1)
            if d.get("perm"):
                req(valu_w, d["r"], 2)
            if d.get("rfl"):
                req(valu_w, d["r"], 1)
            req(valu_sw, set(r for r in d["r"] if r[0] == "s"), 2)
            req(st_data, d["w"], 2)
        elif k in ("ds", "vmem"):
            req(mf_w, d["r"] | d["w"], 12)
            req(valu_sw, set(r for r in d["r"] if r[0] == "s"), 5)
            req(trans_w, d["r"], 1)
            if d.get("dma"):
                need = max(need, m0w + 1 + 1 - pos)
        if need > 0:
            n = need
            while n > 0:
                c = min(n, 8)
                out.append(f"s_nop {c-1}")
                pos += c
                n -= c
            inserted += need
            if verbose:
                print(f"  hazard nop {need} before: {l}", file=sys.stderr)
        out.append(l)
        if k == "mfma":
            for r in d["w"]:
                mf_w[r] = pos
                mf_w_set[r] = d["w"]
            for r in d["c"]:
                mf_c[r] = pos
        elif k == "valu":
            for r in d["w"]:
                if r[0] == "s":
                    valu_sw[r] = pos
                else:
                    valu_w[r] = pos
                    if d.get("trans"):
                        trans_w[r] = pos
                    else:
                        trans_w.pop(r, None)
                    mf_w.pop(r, None)
        elif k == "vmem" and "stdata" in d:
            for r in d["stdata"]:
                st_data[r] = pos
        elif k == "salu":
            if d.get("m0w"):
                m0w = pos
            for r in d["w"]:
                valu_sw.pop(r, None)
        pos += d.get("nop", 1)
    if verbose:
        print("hazard nops inserted:", inserted, file=sys.stderr)
    return out


mf_w_set = {}


def estimate_size(ins):
    n = 0
    for l in ins:
        d = parse(l)
        if d is None:
            continue
        n += 8
    return n


def main():
    ap = argparse.ArgumentParser()
    ap.add_argument("-o", default="k.s")
    ap.add_argument("--kpol", default="")
    ap.add_argument("--vpol", default="")
    ap.add_argument("--wpol", default="")
    ap.add_argument("--pf", type=int, default=6)
    ap.add_argument("--lak", type=int, default=9)
    ap.add_argument("--lav", type=int, default=9)
    ap.add_argument("--lao", type=int, default=9)
    ap.add_argument("--lao3", type=int, default=1)
    ap.add_argument("--vorder", default="alt")
    ap.add_argument("--lw", type=int, default=3)
    ap.add_argument("--lx", type=int, default=3)
    ap.add_argument("--ksteps", default="1,4,7,10")
    ap.add_argument("--touch", action="store_true")
    ap.add_argument("--norotate", dest="rotate", action="store_false")
    ap.add_argument("--nospread", dest="spread", action="store_false")
    ap.add_argument("--wotouch", default="K2")
    ap.add_argument("--dmarate", type=int, default=2)
    ap.add_argument("--stamps", action="store_true")
    ap.add_argument("--nstamps", type=int, default=10)
    ap.add_argument("--stampat", default="K0,V0_0,O3")
    ap.add_argument("--dbgstamps", action="store_true")
    ap.add_argument("--dbgwg", type=int, default=0)
    ap.add_argument("--nodma", action="store_true")
    ap.add_argument("--nomfma", action="store_true")
    ap.add_argument("--xccdump", action="store_true")
    ap.add_argument("--norare", action="store_true")
    ap.add_argument("--cyc", action="store_true")
    ap.add_argument("--stamprange", default="")
    ap.add_argument("--skip", default="")
    ap.add_argument("--stop", default="")
    ap.add_argument("--dump", default="v,0,128")
    ap.add_argument("--nocodetouch", dest="codetouch", action="store_false")
    ap.add_argument("-v", dest="verbose", action="store_true")
    o = ap.parse_args()
    o.kpol = o.kpol.replace("_", " ")
    o.vpol = o.vpol.replace("_", " ")
    o.wpol = o.wpol.replace("_", " ")
    o.stampat = o.stampat.split(",")
    if o.stamprange:
        a, b = [int(x) for x in o.stamprange.split(":")]
        o.stampidx = set(range(a, b))
    else:
        o.stampidx = set()
    k, a, b = o.dump.split(",")
    o.dump = (k, int(a), int(b))
    g = Gen(o)
    open(o.o, "w").write(g.generate())


if __name__ == "__main__":
    main()
```

```python
import re, sys, argparse

NAME = "standalone__mha_block_cached__near_ridge_kernel"

S_W, S_B, S_H, S_LDSW, S_T = 3, 4, 5, 6, 7
SRD_X, SRD_W, SRD_K, SRD_V, SRD_O, SRD_P, SRD_OUT, SRD_F = 8, 12, 16, 20, 24, 28, 32, 36
S_TOFF, S_C, S_T2, S_T3 = 44, 45, 46, 47
S_RET = 48
S_EX = 50
S_NONCE, S_CNT = 52, 53
S_GX, S_GW, S_GV, S_GO = 40, 41, 42, 43
S_CC = 60
S_VAL = 62
S_DONE, S_NEW, S_PEND = 54, 55, 56
S_PTR = 64
S_STAMP = 80

V_P = 0
V_S = [128, 144]
V_PT = 192
V_OA = [160, 128]
V_OPK = 192
V_XD, V_WD, V_KD, V_VD, V_OD = 208, 212, 224, 228, 232
V_XR, V_WR, V_KR, V_VR, V_OR = 216, 220, 236, 244, 246
V_NMT = 208
V_TS, V_TF, V_TT = 224, 225, 226
SETS = {V_WR: (V_WR, 128, 132), V_XR: (V_XR, 136, 140), V_KR: (V_KR, 160, 168)}
V_KW = 212
V_L, V_NM, V_RI, V_LT, V_LT2, V_T0, V_T1, V_T2 = 248, 249, 250, 251, 252, 253, 254, 255

A_Q = 0
A_XB = 64
A_OUT = 0
A_RING = 224
NRING = 8

SLOT = 16384
NSLOT = 10

WS_PART = 0
PART_T = 28 * 1024
PART_H = 4 * PART_T
PART_B = 16 * PART_H
WS_FLAG = 64 * 1024 * 1024
WS_DBG = 96 * 1024 * 1024
WS_STAMP = 200 * 1024 * 1024


def vr(a, n=1):
    return f"v{a}" if n == 1 else f"v[{a}:{a+n-1}]"


def ar(a, n=1):
    return f"a{a}" if n == 1 else f"a[{a}:{a+n-1}]"


def sr(a, n=1):
    return f"s{a}" if n == 1 else f"s[{a}:{a+n-1}]"


class Tile:
    def __init__(self, kind, idx):
        self.kind, self.idx = kind, idx
        self.name = f"{kind}{idx}"
        self.slot = None
        self.first = None
        self.last = None
        self.issue = None

    def __repr__(self):
        return self.name


class Frag:
    def __init__(self, tile, reads, dst=None):
        self.tile, self.reads, self.dst = tile, reads, dst
        self.tag = None


class Gen:
    def __init__(self, opt):
        self.o = opt
        self.ins = []
        self.vm = []
        self.vm_done = -1
        self.lg = []
        self.lg_done = -1
        self.addr_slot = {}
        self.nstamp = 0

    def __call__(self, s):
        for l in s.split("\n"):
            l = l.strip()
            if l:
                self.ins.append(l)

    def vmem(self, s, tag):
        if self.o.nodma and " lds" in s:
            return
        if s == "s_nop 0":
            return
        self(s)
        self.vm.append(tag)

    def lds(self, s, tag):
        if self.o.nomfma:
            return
        if len(self.lg) - 1 - self.lg_done >= 15:
            self("s_waitcnt lgkmcnt(14)")
            self.lg_done = len(self.lg) - 1 - 14
        self(s)
        self.lg.append(tag)

    def wait_vm(self, tags):
        idx = -1
        for i, t in enumerate(self.vm):
            if t in tags:
                idx = i
        if idx <= self.vm_done:
            return
        n = len(self.vm) - 1 - idx
        self(f"s_waitcnt vmcnt({min(n, 63)})")
        self.vm_done = idx if n <= 63 else max(self.vm_done, len(self.vm) - 1 - 63)
        assert self.vm_done >= idx

    def wait_vm_all(self):
        self("s_waitcnt vmcnt(0)")
        self.vm_done = len(self.vm) - 1

    def wait_lg(self, tags):
        idx = -1
        for i in range(len(self.lg) - 1, -1, -1):
            if self.lg[i] in tags:
                idx = i
                break
        if idx <= self.lg_done:
            return
        n = len(self.lg) - 1 - idx
        assert n <= 15, f"lgkmcnt overflow {n}"
        self(f"s_waitcnt lgkmcnt({n})")
        self.lg_done = idx

    STAMP_REGS = list(range(80, 100)) + list(range(64, 76))

    def stamp(self):
        if self.o.stamps:
            k = self.STAMP_REGS[self.nstamp]
            self(f"{'s_memtime' if self.o.cyc else 's_memrealtime'} s[100:101]")
            self("s_waitcnt lgkmcnt(0)")
            self(f"s_mov_b32 s{k}, s100")
            self.lg_done = len(self.lg) - 1
            self.nstamp += 1
            if self.o.both:
                k = self.STAMP_REGS[self.nstamp]
                self("s_memtime s[100:101]\ns_waitcnt lgkmcnt(0)")
                self(f"s_mov_b32 s{k}, s100")
                self.nstamp += 1

    def dma_instrs(self, T):
        k = T.kind
        pol = self.o.kpol if k == "K" else (self.o.vpol if k == "V" else (self.o.opol if k == "O" else self.o.wpol))
        pre = f"s_add_u32 m0, s{S_LDSW}, {T.slot * SLOT}"
        post = None
        soff = f"s{S_TOFF}"
        if k == "X":
            srd, va, soff = SRD_X, V_XD, f"s{S_GX}"
            pre += "\ns_nop 0"
            post = f"s_add_u32 s{S_GX}, s{S_GX}, 128\ns_cmp_eq_u32 s{S_GX}, 896\ns_cselect_b32 s{S_GX}, 0, s{S_GX}"
        elif k == "W":
            srd, va, soff = SRD_W, V_WD, f"s{S_GW}"
            pre += "\ns_nop 0"
            post = f"s_add_u32 s{S_GW}, s{S_GW}, 262144\ns_cmp_eq_u32 s{S_GW}, 3670016\ns_cselect_b32 s{S_GW}, 0, s{S_GW}"
        elif k == "K":
            srd, va = SRD_K, V_KD
            pre += f"\ns_mov_b32 s{S_TOFF}, {T.idx * 16384}"
        elif k == "V":
            c, u = T.idx // 4, T.idx % 4
            srd, va = SRD_V, V_VD
            pre += f"\ns_add_u32 s{S_TOFF}, s{S_GV}, {u * 65536}"
            if u == 3:
                post = f"s_add_u32 s{S_GV}, s{S_GV}, 128\ns_and_b32 s{S_GV}, s{S_GV}, 511"
        elif k == "O":
            c, kap = T.idx // 4, T.idx % 4
            srd, va = SRD_O, V_OD
            pre += f"\ns_add_u32 s{S_TOFF}, s{S_GO}, {kap * 14336}"
            if kap == 3:
                post = f"s_add_u32 s{S_GO}, s{S_GO}, 57344\ns_cmp_eq_u32 s{S_GO}, 229376\ns_cselect_b32 s{S_GO}, 0, s{S_GO}"
        if getattr(T, "reg", None) is not None:
            out = [("STAGE_PRE", False)]
            for j in range(4):
                out.append((f"ds_write_b128 v{V_KW}, a[{T.reg+4*j}:{T.reg+4*j+3}] offset:{j*1024}", "lds"))
            return out
        out = [(pre, False)]
        if k in self.o.skip:
            return [(pre, False), ("s_nop 0", True)]
        for j in range(4):
            txt = f"buffer_load_dwordx4 v{va + j}, s[{srd}:{srd+3}], {soff} offen offset:{j*1024}{pol} lds"
            if j == 3 and post:
                txt += "\n" + post
            out.append((txt, True))
        return out

    def emit_dma(self, T):
        for txt, isv in self.dma_instrs(T):
            if isv:
                self.vmem(txt, T.name)
            else:
                self(txt)

    def emit_item(self, txt, isv, tag):
        if txt == "STAGE_PRE":
            T = self.cur_stage[tag]
            self.wait_vm({"R" + tag})
            cur = self.addr_slot.get(V_KW, 0)
            if cur != T.slot:
                d = ((T.slot - cur) * SLOT) & 0xFFFFFFFF
                self(f"v_add_u32 v{V_KW}, 0x{d:x}, v{V_KW}")
                self.addr_slot[V_KW] = T.slot
        elif isv == "lds":
            self.lds(txt, "S" + tag)
        elif isv:
            self.vmem(txt, tag)
        else:
            self(txt)

    def emit_frag(self, F, dst, isacc=True):
        for (mn, areg, imm, doff, dn) in F.reads:
            base = [b for b in SETS if b <= areg < b + (8 if b == V_KR else 4) and F.tile.kind == {V_WR: "W", V_XR: "X", V_KR: "K"}[b]]
            if base and self.o.sets:
                b = base[0]
                sl = F.tile.slot
                self.lds(f"{mn} {ar(dst + doff, dn)}, v{SETS[b][sl // 4] + areg - b} offset:{imm + (sl % 4) * SLOT}", F.tag)
                continue
            cur = self.addr_slot.get(areg, 0)
            if cur != F.tile.slot:
                d = ((F.tile.slot - cur) * SLOT) & 0xFFFFFFFF
                self(f"v_add_u32 v{areg}, 0x{d:x}, v{areg}")
                self.addr_slot[areg] = F.tile.slot
            self.lds(f"{mn} {ar(dst + doff, dn)}, v{areg} offset:{imm}", F.tag)

    def fragW(self, T, sp, dt):
        m, hi = dt & 3, dt >> 2
        return Frag(T, [("ds_read_b64_tr_b16", V_WR + m, (16 * sp + 4 * rho) * 512 + 256 * hi, 2 * rho, 2) for rho in range(2)])

    def fragX(self, T, sp):
        return Frag(T, [("ds_read_b128", V_XR + sp, 0, 0, 4)])

    def fragK(self, T, sig):
        return Frag(T, [("ds_read_b128", V_KR + (sig & 7), 256 * (sig >> 3), 0, 4)])

    def fragV(self, T, tau, dl):
        return Frag(T, [("ds_read_b64_tr_b16", V_VR + dl, tau * 2048 + rho * 1024, 2 * rho, 2) for rho in range(2)])

    def fragO(self, T, nt):
        return Frag(T, [("ds_read_b64_tr_b16", V_OR + (nt & 1), rho * 8 * 896 + 128 * (nt >> 1), 2 * rho, 2) for rho in range(2)])

    def prologue(self):
        A = self
        o = self.o
        A(f"s_cmp_ge_u32 s2, 256\ns_cbranch_scc1 L_end")
        self.stamp_first = True
        if o.stamps:
            self.stamp()
        A(f"s_load_dwordx16 s[{S_PTR}:{S_PTR+15}], s[0:1], 0")
        if o.codetouch:
            A("s_getpc_b64 s[56:57]")
            A(f"s_lshr_b32 s{S_T}, s2, 3\ns_lshl_b32 s{S_T}, s{S_T}, 7")
            A(f"v_lshlrev_b32 v1, 12, v0\nv_add_u32 v1, s{S_T}, v1")
            A(f"v_cmp_gt_u32 vcc, CODE_TOUCH_N, v0\ns_and_saveexec_b64 s[{S_EX}:{S_EX+1}], vcc\ns_cbranch_execz L_notouch")
            A("global_load_dword v2, v1, s[56:57]")
            A(f"L_notouch:\ns_mov_b64 exec, s[{S_EX}:{S_EX+1}]")
        A(f"v_lshrrev_b32 v1, 6, v0")
        A(f"v_and_b32 v{V_T2}, 63, v0")
        A(f"v_readfirstlane_b32 s{S_W}, v1")
        A(f"""s_and_b32 s{S_T}, s2, 7
        s_lshr_b32 s{S_T2}, s2, 3
        s_lshr_b32 s{S_B}, s{S_T}, 2
        s_lshl_b32 s{S_B}, s{S_B}, 3
        s_lshr_b32 s{S_T3}, s{S_T2}, 2
        s_add_u32 s{S_B}, s{S_B}, s{S_T3}
        s_and_b32 s{S_H}, s{S_T}, 3
        s_lshl_b32 s{S_H}, s{S_H}, 2
        s_and_b32 s{S_T3}, s{S_T2}, 3
        s_add_u32 s{S_H}, s{S_H}, s{S_T3}
        s_lshl_b32 s{S_LDSW}, s{S_W}, 12""")
        if o.rotate:
            A(f"""s_and_b32 s{S_T}, s{S_H}, 3
            s_lshl_b32 s{S_T}, s{S_T}, 1
            s_add_u32 s{S_T}, s{S_T}, s{S_B}
            s_mul_i32 s{S_T2}, s{S_T}, 37
            s_lshr_b32 s{S_T2}, s{S_T2}, 8
            s_mul_i32 s{S_T2}, s{S_T2}, 7
            s_sub_u32 s{S_T}, s{S_T}, s{S_T2}
            s_lshl_b32 s{S_GX}, s{S_T}, 7
            s_lshl_b32 s{S_GW}, s{S_T}, 19
            s_and_b32 s{S_T}, s{S_B}, 3
            s_lshl_b32 s{S_GV}, s{S_T}, 7
            s_mul_i32 s{S_GO}, s{S_T}, 57344""")
        else:
            A(f"s_mov_b32 s{S_GX}, 0\ns_mov_b32 s{S_GW}, 0\ns_mov_b32 s{S_GV}, 0\ns_mov_b32 s{S_GO}, 0")
        L = V_T2
        A(f"""v_lshrrev_b32 v3, 3, v{L}
        v_and_b32 v4, 7, v{L}
        v_lshrrev_b32 v5, 4, v{L}
        v_lshrrev_b32 v6, 5, v{L}
        v_and_b32 v7, 31, v{L}""")
        A(f"s_lshl_b32 s{S_T}, s{S_W}, 5\nv_add_u32 v8, s{S_T}, v3")
        A("v_mul_u32_u24 v8, 896, v8")
        for j in range(4):
            A(f"v_add_u32 v9, {4*j}, v5\nv_and_b32 v9, 7, v9\nv_xor_b32 v9, v4, v9\nv_lshl_add_u32 v9, v9, 4, v8")
            A(f"v_add_u32 v{V_XD+j}, {j*(8*896-1024)}, v9")
        A(f"s_lshl_b32 s{S_T}, s{S_W}, 3\nv_add_u32 v8, s{S_T}, v6")
        A("v_lshlrev_b32 v10, 13, v8")
        for j in range(4):
            A(f"v_add_u32 v9, {2*j}, v6\nv_and_b32 v9, 3, v9\nv_lshlrev_b32 v9, 2, v9\nv_xor_b32 v9, v7, v9\nv_lshl_add_u32 v9, v9, 4, v10")
            A(f"v_add_u32 v{V_WD+j}, {j*(2*8192-1024)}, v9")
        A("v_lshlrev_b32 v10, 9, v8")
        for j in range(4):
            A(f"v_add_u32 v9, {2*j}, v8\nv_and_b32 v9, 15, v9\nv_xor_b32 v9, v7, v9\nv_lshl_add_u32 v{V_KD+j}, v9, 4, v10")
        A("s_waitcnt lgkmcnt(0)")
        P = S_PTR
        A(f"""s_mul_i32 s{S_T}, s{S_B}, 100352
        s_add_u32 s{SRD_X}, s{P}, s{S_T}
        s_addc_u32 s{SRD_X+1}, s{P+1}, 0
        s_mov_b32 s{SRD_X+2}, 100352
        s_mov_b32 s{SRD_X+3}, 0x20000
        s_lshl_b32 s{S_T}, s{S_H}, 9
        s_add_u32 s{SRD_W}, s{P+6}, s{S_T}
        s_addc_u32 s{SRD_W+1}, s{P+7}, 0
        s_sub_u32 s{SRD_W+2}, 3670016, s{S_T}
        s_mov_b32 s{SRD_W+3}, 0x20000
        s_lshl_b32 s{S_T}, s{S_B}, 4
        s_add_u32 s{S_T}, s{S_T}, s{S_H}
        s_lshl_b32 s{S_T}, s{S_T}, 18
        s_add_u32 s{SRD_K}, s{P+2}, s{S_T}
        s_addc_u32 s{SRD_K+1}, s{P+3}, 0
        s_mov_b32 s{SRD_K+2}, 262144
        s_mov_b32 s{SRD_K+3}, 0x20000
        s_add_u32 s{SRD_V}, s{P+4}, s{S_T}
        s_addc_u32 s{SRD_V+1}, s{P+5}, 0
        s_mov_b32 s{SRD_V+2}, 262144
        s_mov_b32 s{SRD_V+3}, 0x20000""")

    def prologue2(self):
        A = self
        P = S_PTR
        L = V_T2
        A(f"""s_mul_i32 s{S_T}, s{S_H}, 229376
        s_add_u32 s{SRD_O}, s{P+8}, s{S_T}
        s_addc_u32 s{SRD_O+1}, s{P+9}, 0
        s_mov_b32 s{SRD_O+2}, 229376
        s_mov_b32 s{SRD_O+3}, 0x20000
        s_mul_i32 s{S_T}, s{S_B}, {PART_B}
        s_add_u32 s{SRD_P}, s{P+14}, s{S_T}
        s_addc_u32 s{SRD_P+1}, s{P+15}, 0
        s_mov_b32 s{SRD_P+2}, {PART_B}
        s_mov_b32 s{SRD_P+3}, 0x20000
        s_mul_i32 s{S_T}, s{S_B}, 100352
        s_add_u32 s{SRD_OUT}, s{P+10}, s{S_T}
        s_addc_u32 s{SRD_OUT+1}, s{P+11}, 0
        s_mov_b32 s{SRD_OUT+2}, 100352
        s_mov_b32 s{SRD_OUT+3}, 0x20000
        s_lshl_b32 s{S_T}, s{S_B}, 13
        s_add_u32 s{S_T}, s{S_T}, {WS_FLAG}
        s_add_u32 s{SRD_F}, s{P+14}, s{S_T}
        s_addc_u32 s{SRD_F+1}, s{P+15}, 0
        s_mov_b32 s{SRD_F+2}, 8192
        s_mov_b32 s{SRD_F+3}, 0x20000
        s_mov_b32 s{S_C}, 0x3db8aa3b
        s_mov_b32 s{S_CC}, 0x3db8aa3b
        s_mov_b32 s{S_CC+1}, 0x3db8aa3b""")
        A(f"s_lshl_b32 s{S_T}, s{S_W}, 5\nv_add_u32 v8, s{S_T}, v3\nv_lshlrev_b32 v8, 9, v8")
        A("v_and_b32 v9, 1, v5\nv_lshlrev_b32 v9, 2, v9\nv_xor_b32 v9, v4, v9\nv_lshl_add_u32 v9, v9, 4, v8")
        for j in range(4):
            A(f"v_add_u32 v{V_VD+j}, {j*(8*512-1024)}, v9")
        A(f"s_lshl_b32 s{S_T}, s{S_W}, 8\nv_add_u32 v8, s{S_T}, v{L}")
        A(f"s_mov_b32 s{S_T2}, 1171")
        for j in range(4):
            A(f"""v_add_u32 v9, {64*j}, v8
            v_mul_u32_u24 v10, s{S_T2}, v9
            v_lshrrev_b32 v10, 16, v10
            v_mul_u32_u24 v11, 56, v10
            v_sub_u32 v11, v9, v11
            v_lshrrev_b32 v12, 1, v10
            v_and_b32 v12, 1, v12
            v_lshlrev_b32 v12, 2, v12
            v_xor_b32 v11, v11, v12
            v_mul_u32_u24 v10, 896, v10
            v_lshl_add_u32 v11, v11, 4, v10
            v_subrev_u32 v11, {1024*j}, v11
            v_cmp_gt_u32 vcc, 896, v9
            v_mov_b32 v12, 0x40000000
            v_cndmask_b32 v{V_OD+j}, v12, v11, vcc""")
        A(f"""v_and_b32 v8, 1, v5
        v_lshrrev_b32 v9, 2, v{L}
        v_and_b32 v9, 3, v9
        v_and_b32 v10, 3, v{L}
        v_and_b32 v11, 1, v10
        v_lshrrev_b32 v12, 1, v10""")
        A("""v_lshl_add_u32 v13, v6, 3, v9
        v_lshlrev_b32 v13, 9, v13
        v_lshl_add_u32 v14, v8, 1, v11
        v_lshl_add_u32 v13, v14, 4, v13
        v_lshl_add_u32 v13, v12, 3, v13""")
        for m in range(4):
            A(f"v_xor_b32 v14, {m}, v9\nv_lshl_add_u32 v{V_WR+m}, v14, 6, v13")
        A(f"s_mov_b32 s{S_T2}, 112")
        A(f"s_lshl_b32 s{S_T}, s{S_W}, 5\nv_add_u32 v13, s{S_T}, v7\nv_cmp_gt_u32_e64 s[{S_VAL}:{S_VAL+1}], s{S_T2}, v13\nv_lshrrev_b32 v14, 1, v13\nv_and_b32 v14, 7, v14\nv_lshlrev_b32 v13, 7, v13")
        for s in range(4):
            A(f"v_add_u32 v15, {2*s}, v6\nv_xor_b32 v15, v15, v14\nv_lshl_add_u32 v{V_XR+s}, v15, 4, v13")
        A("v_lshlrev_b32 v13, 9, v7\nv_and_b32 v14, 15, v7")
        for m in range(8):
            A(f"v_add_u32 v15, {2*m}, v6\nv_xor_b32 v15, v15, v14\nv_lshl_add_u32 v{V_KR+m}, v15, 4, v13")
        A("""v_lshl_add_u32 v13, v6, 2, v9
        v_lshrrev_b32 v14, 1, v9
        v_lshl_add_u32 v15, v8, 1, v12
        v_lshlrev_b32 v16, 7, v13
        v_lshl_add_u32 v16, v15, 4, v16
        v_lshl_add_u32 v16, v11, 3, v16""")
        for d in range(2):
            A(f"v_xor_b32 v17, {d}, v14\nv_lshl_add_u32 v{V_VR+d}, v17, 6, v16")
        A("""v_mul_u32_u24 v16, 896, v13
        v_lshl_add_u32 v15, v8, 1, v11
        v_lshl_add_u32 v16, v15, 4, v16
        v_lshl_add_u32 v16, v12, 3, v16""")
        for p in range(2):
            A(f"v_xor_b32 v17, {p}, v14\nv_lshl_add_u32 v{V_OR+p}, v17, 6, v16")
        if self.o.sets:
            for b, n in ((V_WR, 4), (V_XR, 4), (V_KR, 8)):
                for i in range(n):
                    A(f"v_add_u32 v{SETS[b][1] + i}, 0x10000, v{b + i}\nv_add_u32 v{SETS[b][2] + i}, 0x20000, v{b + i}")
        A(f"s_cmp_lg_u32 s{S_H}, 0\ns_cbranch_scc1 L_nononce")
        A(f"s_cmp_lg_u32 s{S_W}, 0\ns_cbranch_scc1 L_nononce")
        A(f"""s_memrealtime s[56:57]
        s_waitcnt lgkmcnt(0)
        s_or_b32 s56, s56, 1
        v_mov_b32 v13, s56
        v_mov_b32 v14, s{S_B}
        v_lshlrev_b32 v14, 2, v14
        v_add_u32 v14, 128, v14
        s_mov_b64 s[{S_EX}:{S_EX+1}], exec
        s_mov_b64 exec, 1
        global_store_dword v14, v13, s[{P+12}:{P+13}] sc1
        s_mov_b64 exec, s[{S_EX}:{S_EX+1}]
        L_nononce:""")

    def build(self):
        o = self.o
        X = [Tile("X", i) for i in range(7)]
        W = [Tile("W", i) for i in range(14)]
        K = [Tile("K", i) for i in range(16)]
        V = [Tile("V", i) for i in range(16)]
        O = [Tile("O", i) for i in range(16)]
        steps = []

        def M(D, C, Afr, B, Bfr=None, dn=16, dacc=False, bacc=False):
            return dict(D=D, C=C, A=Afr, B=B, Bfr=Bfr, dacc=dacc, bacc=bacc)

        xbuf = 0
        for t in range(14):
            mf = []
            for sp in range(2):
                s = 2 * t + sp
                Xt = X[s // 4]
                bf = self.fragX(Xt, s % 4)
                bf.dst = A_XB + 4 * (s & 3)
                order = range(8)
                for dt in order:
                    mf.append(M(V_P + 16 * dt, None if s == 0 else V_P + 16 * dt, self.fragW(W[t], sp, dt), bf.dst, Bfr=bf if dt == 0 else None, bacc=True))
            if t == 13:
                f0 = [m for m in mf[:8]]
                f1 = [m for m in mf[8:]]
                mf = []
                for dt in range(8):
                    mf += [f0[dt], f1[dt]]
                b0, b1 = f0[0]["Bfr"], f1[0]["Bfr"]
                mf[0]["Bfr"], mf[1]["Bfr"] = b0, b1
            steps.append(dict(name=f"W{t}", mf=mf, fill=[], tiles=[W[t], X[(2 * t) // 4]]))
        for t in range(16):
            S = V_S[t & 1]
            mf = [M(S, None if sig == 0 else S, self.fragK(K[t], sig), A_Q + 4 * sig, bacc=True) for sig in range(16)]
            if t >= 2:
                mf[0]["Cinit"] = V_NMT
            steps.append(dict(name=f"K{t}", mf=mf, fill=[], tiles=[K[t]]))
        def vstep(c, u):
            OA = V_OA[c & 1]
            mf = []
            for tau in range(8):
                kt, beta = 4 * u + (tau >> 1), tau & 1
                for dl in range(2):
                    first = (u == 0 and tau == 0)
                    mf.append(M(OA + 16 * dl, None if first else OA + 16 * dl, self.fragV(V[4 * c + u], tau, dl), V_P + 8 * kt + 4 * beta))
            return dict(name=f"V{c}_{u}", mf=mf, fill=[], tiles=[V[4 * c + u]])

        def ostep(c, kap):
            mf = []
            for nt in range(14):
                first = (c == 0 and kap == 0)
                mf.append(M(A_OUT + 16 * nt, None if first else A_OUT + 16 * nt, self.fragO(O[4 * c + kap], nt), V_OPK + 4 * kap, dacc=True))
            return dict(name=f"O{c}_{kap}", mf=mf, fill=[], tiles=[O[4 * c + kap]])

        for u in range(4):
            steps.append(vstep(0, u))
        for c in range(1, 4):
            if self.o.vorder == "alt" :
                seq = "V0 O0 V1 O1 V2 O2 O3 V3"
            elif self.o.vorder == "run":
                seq = "V0 V1 V2 V3 O0 O1 O2 O3" if c < 3 else "V0 V1 O0 O1 O2 O3 V2 V3"
            elif self.o.vorder == "run2":
                seq = "V0 V1 O0 O1 V2 O2 O3 V3" if c < 3 else "V0 V1 O0 O1 O2 O3 V2 V3"
            for e in seq.split():
                steps.append(vstep(c, int(e[1])) if e[0] == "V" else ostep(c - 1, int(e[1])))
        mf = []
        for nt in range(14):
            for kap in range(4):
                mf.append(M(A_OUT + 16 * nt, A_OUT + 16 * nt, self.fragO(O[12 + kap], nt), V_OPK + 4 * kap, dacc=True))
        steps.append(dict(name="O3", mf=mf, fill=[], tiles=[O[12], O[13], O[14], O[15]]))

        for si, st in enumerate(steps):
            st["idx"] = si
            for m in st["mf"]:
                for fr in (m["A"], m["Bfr"]):
                    if fr is not None:
                        T = fr.tile
                        T.first = si if T.first is None else T.first
                        T.last = si
        self.steps, self.X, self.W, self.K, self.V, self.O = steps, X, W, K, V, O
        return steps

    def plan_dma(self):
        X, W, K, V, O = self.X, self.W, self.K, self.V, self.O
        steps = self.steps
        o = self.o
        LW, LX = o.lw, o.lx
        ksteps = [int(x) for x in o.ksteps.split(",")] if o.ksteps else []
        initA = [X[0], W[0], W[1]]
        order = []
        seen = set(t.name for t in initA)

        def add(T, d):
            if T.name not in seen:
                seen.add(T.name)
                order.append((T, d))
        kq = list(enumerate(ksteps))
        rsteps = [int(x) for x in o.rsteps.split(",")] if o.rsteps else []
        self.regk = {}
        for i, rs in enumerate(rsteps):
            K[i].reg = 80 + 16 * i
            K[i].rload = rs
            self.regk.setdefault(rs, []).append(K[i])
        wst = [int(x) for x in o.wsteps.split(",")] if o.wsteps else [t - LW for t in range(14)]
        xst = [int(x) for x in o.xsteps.split(",")] if o.xsteps else [2 * x - LX for x in range(7)]
        for s in range(-1, 14):
            for t in range(14):
                if wst[t] <= s:
                    add(W[t], s)
            for x in range(7):
                if xst[x] <= s:
                    add(X[x], s)
            for i, ks in kq:
                if ks <= s:
                    add(K[i], s)
        late = []
        for st in steps:
            for T in st["tiles"]:
                if T.name not in seen and T not in late:
                    la = {"K": o.lak, "V": o.lav, "O": o.lao}[T.kind]
                    late.append(T)
                    T.d = T.first - la
                    if T.kind == "K":
                        T.d = max(T.d, o.kafter)
                    if getattr(T, "reg", None) is not None:
                        T.d = T.first - 2
                    if T.kind == "O" and T.idx >= 12:
                        T.d = T.first - o.lao - o.lao3 * (15 - T.idx) - 1
        for lst in (V, O):
            prev = -100
            for T in lst:
                if hasattr(T, "d"):
                    T.d = max(T.d, prev)
                    prev = T.d
        late.sort(key=lambda T: (T.d, T.first, T.idx))
        for T in late:
            add(T, max(T.d, 0))
        order.sort(key=lambda x: x[1])
        free = list(range(NSLOT))
        for T in initA:
            T.slot, T.issue = free.pop(0), -2
        self.initA = initA
        self.initB = []
        q = list(order)
        while q and q[0][1] < 0 and free:
            T, d = q.pop(0)
            T.slot, T.issue = free.pop(0), -1
            self.initB.append(T)
        allt = initA + [t for t, _ in order]
        hard = [(T, d) for T, d in q if getattr(T, "reg", None) is not None]
        q = [(T, d) for T, d in q if getattr(T, "reg", None) is None]
        for s, st in enumerate(steps):
            for T in allt:
                if T.slot is not None and T.last == s - 1:
                    free.append(T.slot)
            st["dma"] = []
            n = 0
            while hard and hard[0][1] <= s:
                assert free, f"no slot for staged {hard[0]} at {s}"
                T, d = hard.pop(0)
                T.slot = free.pop(0)
                T.issue = s
                st["dma"].append(T)
            def shortfall():
                need, have, worst = 0, 0, 0
                for s2 in range(s + 1, s + 12):
                    have += len([1 for T in allt if T.slot is not None and T.last == s2 - 1])
                    have += len([1 for T, d in hard if T.last == s2 - 1])
                    need += len([1 for T, d in hard if d == s2])
                    worst = max(worst, need - have)
                return worst
            while q and len(free) > shortfall() and n < o.dmarate and q[0][1] <= s:
                T, d = q.pop(0)
                T.slot = free.pop(0)
                T.issue = s
                st["dma"].append(T)
                n += 1
        assert not q
        for lst in (X, W, V, O):
            for a, b in zip(lst, lst[1:]):
                assert allt.index(a) < allt.index(b), (a, b)
        for T in allt:
            need = self.avail(T)
            assert T.issue < need or T.issue < 0, f"{T} issued at {T.issue} but needed at boundary {need}"
        if self.regk:
            assert W[13].issue < o.kwstep, W[13].issue
            for T in K:
                if getattr(T, "reg", None) is not None:
                    assert T.issue >= o.kwstep and T.rload < T.issue, (T, T.issue)
        if self.o.verbose:
            for T in allt:
                print(T.name, "slot", T.slot, "issue", T.issue, "first", T.first, "last", T.last, file=sys.stderr)

    def touch_xw(self):
        A = self
        L = V_T2
        A(f"""s_and_b32 s{S_T}, s{S_B}, 7
        s_lshl_b32 s{S_T}, s{S_T}, 2
        s_lshl_b32 s{S_T2}, s{S_W}, 7
        s_add_u32 s{S_T}, s{S_T}, s{S_T2}
        v_lshrrev_b32 v20, 4, v{L}
        v_lshlrev_b32 v20, 5, v20
        v_lshrrev_b32 v21, 2, v{L}
        v_and_b32 v21, 3, v21
        v_add3_u32 v20, v20, v21, s{S_T}
        v_lshlrev_b32 v20, 13, v20
        v_and_b32 v21, 3, v{L}
        v_lshl_add_u32 v20, v21, 7, v20""")
        self.vmem(f"buffer_load_dword v{V_T0}, v20, s[{SRD_W}:{SRD_W+3}], 0 offen", "TCH")
        A(f"""s_and_b32 s{S_T}, s{S_H}, 3
        s_mul_i32 s{S_T}, s{S_T}, 28
        v_cmp_le_u32 vcc, 28, v{L}
        v_subrev_u32 v21, 28, v{L}
        v_cndmask_b32 v22, v{L}, v21, vcc
        v_add_u32 v22, s{S_T}, v22
        v_mul_u32_u24 v22, 896, v22
        v_cndmask_b32 v21, 0, 1, vcc
        s_lshl_b32 s{S_T2}, s{S_W}, 1
        v_add_u32 v21, s{S_T2}, v21
        v_cmp_gt_u32 vcc, 7, v21
        v_lshl_add_u32 v22, v21, 7, v22
        v_mov_b32 v23, 0x40000000
        v_cndmask_b32 v22, v23, v22, vcc
        v_cmp_gt_u32 vcc, 56, v{L}
        s_nop 1
        v_cndmask_b32 v22, v23, v22, vcc""")
        self.vmem(f"buffer_load_dword v{V_T1}, v22, s[{SRD_X}:{SRD_X+3}], 0 offen", "TCH")

    def tlb_warm(self):
        A = self
        L = V_T2
        P = S_PTR
        def two(srd, a, b):
            A(f"s_mov_b32 s{S_T}, {b - a}\nv_mul_u32_u24 v20, s{S_T}, v{L}")
            if a:
                A(f"v_add_u32 v20, {a}, v20")
            self.vmem(f"buffer_load_dword v{V_T0}, v20, s[{srd}:{srd+3}], 0 offen", "TLB")
        two(SRD_K, 0, 262140)
        self.vmem(f"buffer_load_dword v{V_T0}, v20, s[{SRD_V}:{SRD_V+3}], 0 offen", "TLB")
        two(SRD_O, 0, 229372)
        two(SRD_P, 3 * PART_T + 256, 15 * PART_H + 3 * PART_T + 27 * 1024 + 256)
        A(f"""s_lshr_b32 s{S_T}, s{S_H}, 2
        s_add_u32 s{S_T}, s{S_T}, 2
        s_and_b32 s{S_T}, s{S_T}, 3
        s_lshl_b32 s{S_T}, s{S_T}, 8
        v_lshlrev_b32 v20, 30, v{L}
        v_add_u32 v20, s{S_T}, v20""")
        self.vmem(f"buffer_load_dword v{V_T0}, v20, s[{SRD_OUT}:{SRD_OUT+3}], 0 offen", "TLB")
        A(f"v_mov_b32 v20, {WS_FLAG + 1048576}")
        self.vmem(f"global_load_dword v{V_T0}, v20, s[{P+14}:{P+15}]", "TLB")
        A(f"v_mov_b32 v20, 0")
        self.vmem(f"global_load_dword v{V_T0}, v20, s[{P+12}:{P+13}]", "TLB")

    def touch_wo_instrs(self):
        L = V_T2
        R = 20
        f = [f"s_and_b32 s{S_T}, s{S_B}, 7", f"s_lshl_b32 s{S_T}, s{S_T}, 2", f"s_add_u32 s{S_T}, s{S_T}, s{S_W}",
             f"s_mul_i32 s{S_T}, s{S_T}, 56",
             f"v_cmp_gt_u32 vcc, 56, v{L}", f"v_add_u32 v{V_T1}, s{S_T}, v{L}", f"v_lshlrev_b32 v{V_T1}, 7, v{V_T1}",
             f"v_mov_b32 v{V_T0}, 0x40000000", f"v_cndmask_b32 v{V_T1}, v{V_T0}, v{V_T1}, vcc"]
        return f, f"buffer_load_dword v{V_T0}, v{V_T1}, s[{SRD_O}:{SRD_O+3}], 0 offen"

    def avail(self, T):
        if T.first <= 1:
            return T.first
        return T.first - 1

    def softmax_fill(self, t):
        S = V_S[t & 1]
        f = []
        def a(txt, c=4):
            f.append((txt, c))
        if t == 0:
            a(f"v_max3_f32 v{V_T0}, v{S}, v{S+1}, v{S+2}")
            for i in range(3, 15, 2):
                a(f"v_max3_f32 v{V_T0}, v{V_T0}, v{S+i}, v{S+i+1}")
            a(f"v_max_f32 v{V_T0}, v{V_T0}, v{S+15}")
            a(f"v_mov_b32 v{V_T1}, v{V_T0}")
            a("s_nop 1")
            a(f"v_permlane32_swap_b32 v{V_T0}, v{V_T1}")
            a(f"v_max_f32 v{V_T0}, v{V_T0}, v{V_T1}")
            a(f"v_ceil_f32 v{V_T0}, v{V_T0}")
            a(f"v_sub_f32 v{V_NM}, 0, v{V_T0}")
            if self.o.zeropad:
                a(f"v_mov_b32 v{V_T1}, 0xf149f2ca")
                a(f"v_cndmask_b32_e64 v{V_NM}, v{V_T1}, v{V_NM}, s[{S_VAL}:{S_VAL+1}]")
            a(f"v_mov_b32 v{V_L}, 0")
            for i in range(16):
                a(f"v_mov_b32 v{V_NMT+i}, v{V_NM}")
        if t <= 1:
            for i in range(16):
                a(f"v_add_f32 v{S+i}, v{S+i}, v{V_NM}")
        P = V_P + 8 * t
        E = lambda i: a(f"v_exp_f32 v{V_PT+i}, v{S+i}", 8)
        E(0); E(1)
        for k in range(1, 8):
            E(2 * k); E(2 * k + 1)
            j = k - 1
            if j == 0:
                a(f"v_add_f32 v{V_LT}, v{V_PT}, v{V_PT+1}")
            elif j == 1:
                a(f"v_add_f32 v{V_LT2}, v{V_PT+2}, v{V_PT+3}")
            else:
                a(f"v_add_f32 v{V_LT}, v{V_LT}, v{V_PT+2*j}")
                a(f"v_add_f32 v{V_LT2}, v{V_LT2}, v{V_PT+2*j+1}")
            a(f"v_cvt_pk_bf16_f32 v{P+j}, v{V_PT+2*j}, v{V_PT+2*j+1}")
        a(f"v_add_f32 v{V_LT}, v{V_LT}, v{V_LT2}")
        a(f"v_add_f32 v{V_LT2}, v{V_PT+14}, v{V_PT+15}")
        a(f"v_cvt_pk_bf16_f32 v{P+7}, v{V_PT+14}, v{V_PT+15}")
        a(f"v_add_f32 v{V_LT}, v{V_LT}, v{V_LT2}")
        if t > 0 and not self.o.norare:
            a(f"v_cmp_ngt_f32 vcc, s{S_T3}, v{V_LT}")
            a(f"s_cbranch_vccnz L_rare{t}\nL_back{t}:")
            self.rare_sites.append(t)
        a(f"v_add_f32 v{V_L}, v{V_L}, v{V_LT}")
        return f

    def rare_code(self):
        A = self
        for t in self.rare_sites:
            A(f"L_rare{t}:\ns_call_b64 s[{S_RET}:{S_RET+1}], L_rare_s{t&1}")
            if t == 15:
                for i in range(32):
                    A(f"v_mul_f32 v{V_OA[0]+i}, v{V_OA[0]+i}, v{V_T1}")
            for k in range(8):
                A(f"v_cvt_pk_bf16_f32 v{V_P + 8*t + k}, v{V_PT+2*k}, v{V_PT+2*k+1}")
            A(f"s_branch L_back{t}")
        for par in range(2):
            S, S2 = V_S[par], V_S[1 - par]
            A(f"L_rare_s{par}:\ns_nop 7\ns_nop 7")
            A(f"v_max3_f32 v{V_T0}, v{S}, v{S+1}, v{S+2}")
            for i in range(3, 15, 2):
                A(f"v_max3_f32 v{V_T0}, v{V_T0}, v{S+i}, v{S+i+1}")
            A(f"v_max_f32 v{V_T0}, v{V_T0}, v{S+15}")
            A(f"v_mov_b32 v{V_T1}, v{V_T0}\ns_nop 1\nv_permlane32_swap_b32 v{V_T0}, v{V_T1}")
            A(f"v_max_f32 v{V_T0}, v{V_T0}, v{V_T1}")
            A(f"v_ceil_f32 v{V_T0}, v{V_T0}")
            A(f"v_max_f32 v{V_T0}, 0, v{V_T0}")
            A(f"v_exp_f32 v{V_T1}, -v{V_T0}")
            A(f"v_sub_f32 v{V_NM}, v{V_NM}, v{V_T0}")
            A(f"v_mul_f32 v{V_L}, v{V_L}, v{V_T1}")
            for i in range(16):
                A(f"v_mov_b32 v{V_NMT+i}, v{V_NM}")
                A(f"v_sub_f32 v{S+i}, v{S+i}, v{V_T0}")
                A(f"v_sub_f32 v{S2+i}, v{S2+i}, v{V_T0}")
            for r in range(128):
                A(f"v_lshlrev_b32 v{V_LT}, 16, v{V_P+r}\nv_and_b32 v{V_LT2}, 0xffff0000, v{V_P+r}")
                A(f"v_mul_f32 v{V_LT}, v{V_LT}, v{V_T1}\nv_mul_f32 v{V_LT2}, v{V_LT2}, v{V_T1}")
                A(f"v_cvt_pk_bf16_f32 v{V_P+r}, v{V_LT}, v{V_LT2}")
            for i in range(16):
                A(f"v_exp_f32 v{V_PT+i}, v{S+i}")
            A(f"s_nop 0\nv_add_f32 v{V_LT}, v{V_PT}, v{V_PT+1}")
            for i in range(2, 16):
                A(f"v_add_f32 v{V_LT}, v{V_LT}, v{V_PT+i}")
            A(f"s_nop 1\ns_setpc_b64 s[{S_RET}:{S_RET+1}]")

    def qcvt_fill(self, dt):
        f = []
        D = V_P + 16 * dt
        for k in range(8):
            f.append(f"v_pk_mul_f32 v[{D+2*k}:{D+2*k+1}], v[{D+2*k}:{D+2*k+1}], s[{S_CC}:{S_CC+1}]")
        for k in range(8):
            f.append(f"v_cvt_pk_bf16_f32 v{V_PT + (k + 8*(dt&1))}, v{D+2*k}, v{D+2*k+1}")
        for k in range(8):
            f.append(f"v_accvgpr_write_b32 a{A_Q + 8*dt + k}, v{V_PT + (k + 8*(dt&1))}")
        return f

    def ofin_fill(self, c):
        OA = V_OA[c & 1]
        f = []
        for i in range(32):
            f.append(f"v_mul_f32 v{OA+i}, v{OA+i}, v{V_RI}")
        for k in range(16):
            f.append(f"v_cvt_pk_bf16_f32 v{V_OPK+k}, v{OA+2*k}, v{OA+2*k+1}")
        return f

    def lfin(self):
        return [f"v_mov_b32 v{V_T1}, v{V_L}", "s_nop 1", f"v_permlane32_swap_b32 v{V_L}, v{V_T1}", "s_nop 0",
                f"v_add_f32 v{V_L}, v{V_L}, v{V_T1}", f"v_rcp_f32 v{V_RI}, v{V_L}", "s_nop 0"] + \
               ([f"v_cndmask_b32_e64 v{V_RI}, 0, v{V_RI}, s[{S_VAL}:{S_VAL+1}]"] if self.o.zeropad else [])

    def emit_main(self):
        o = self.o
        steps = self.steps
        self.rare_sites = []
        mfs = []
        for st in steps:
            for k, m in enumerate(st["mf"]):
                m["step"], m["k"] = st["idx"], k
                mfs.append(m)
        rq = []
        ring = 0
        for gi, m in enumerate(mfs):
            m["gi"] = gi
            if m["Bfr"] is not None:
                fr = m["Bfr"]
                fr.tag = f"B{gi}"
                rq.append((gi, fr, fr.dst))
            fr = m["A"]
            fr.tag = f"A{gi}"
            fr.dst = A_RING + 4 * (ring % NRING)
            fr.ringidx = ring
            ring += 1
            rq.append((gi, fr, fr.dst))
        self.rqi = 0
        PF = o.pf

        def pump(cur_gi, cur_step):
            while self.rqi < len(rq):
                gi, fr, dst = rq[self.rqi]
                if gi > cur_gi + PF:
                    break
                if self.avail(fr.tile) > cur_step:
                    break
                if fr.tag.startswith("B") and gi - cur_gi > (8 if mfs[gi]["step"] < 13 else 0) and False:
                    break
                self.emit_frag(fr, dst)
                self.rqi += 1

        name2step = {st["name"]: st for st in steps}
        for t in range(16):
            f = self.softmax_fill(t)
            if t < 15:
                name2step[f"K{t+1}"]["fill"] = ("late", 2, f)
            else:
                name2step["V0_0"]["fill"] = ("late", 2, f + [(x, 4) for x in self.lfin()])
        for c in range(3):
            name2step[f"V{c+1}_0"]["fill"] = ("late", 3, [(x, 4) for x in self.ofin_fill(c)])

        stop = o.stop
        for st in steps:
            s = st["idx"]
            need = [T.name for T in (self.X + self.W + self.K + self.V + self.O) if self.avail(T) == s]
            byname = {T.name: T for T in self.K}
            staged = [x for x in need if x in byname and getattr(byname[x], "reg", None) is not None]
            need = [x for x in need if x not in staged]
            if need:
                self.wait_vm(set(need))
            if staged:
                self.wait_lg(set("S" + x for x in staged))
            self("s_barrier")
            if o.stamps and (st["name"] in o.stampat or s in o.stampidx):
                self.stamp()
            cm = f"; ---- step {s} {st['name']} dma={st['dma']}"
            self.ins.append(cm)
            if stop and st["name"] == stop:
                return False
            if st["name"] == o.wotouch:
                pre, ld = self.touch_wo_instrs()
                for l in pre:
                    self(l)
                self.vmem(ld, "TCH")
            if "pre" in st:
                self("s_nop 7\ns_nop 3")
                for l in st["pre"]:
                    self(l)
            if st["name"] == "O3":
                self("s_nop 7\ns_nop 3")
                for l in self.ofin_fill(3):
                    self(l)
                self("s_nop 1")
            fillq = []
            dmaq = []
            items = []
            for T in self.regk.get(s, []):
                pol = self.o.kpol
                it = [(f"s_mov_b32 s{S_TOFF}, {T.idx * 16384}", False, "R" + T.name)]
                for j in range(4):
                    it.append((f"buffer_load_dwordx4 a[{T.reg+4*j}:{T.reg+4*j+3}], v{V_KD+j}, s[{SRD_K}:{SRD_K+3}], s{S_TOFF} offen offset:{j*1024}{pol}", True, "R" + T.name))
                items.append(it)
            dm = [[(txt, isv, T.name) for txt, isv in self.dma_instrs(T)] for T in st["dma"]]
            if o.regfirst:
                items = items + dm
            else:
                items = dm + items
            for it in items:
                dmaq += it
            self.cur_stage = {T.name: T for T in st["dma"]}
            if s == o.kwstep and self.regk:
                self(f"v_lshlrev_b32 v{V_KW}, 4, v{V_T2}\nv_add_u32 v{V_KW}, s{S_LDSW}, v{V_KW}")
                self.addr_slot[V_KW] = 0
            mode = st["fill"]
            fl_start, fl = (mode[1], list(mode[2])) if mode else (0, [])
            n = len(st["mf"])
            ndma0 = len([1 for x in dmaq if x[1]])
            if s == 0:
                pump(st["mf"][0]["gi"] - 1, s)
            for k, m in enumerate(st["mf"]):
                gi = m["gi"]
                pump(gi, s) if k == 0 else None
                tags = {m["A"].tag}
                if m["Bfr"] is not None:
                    tags.add(m["Bfr"].tag)
                if o.mergewait and k % 2 == 0 and k + 1 < n:
                    m2 = st["mf"][k + 1]
                    t2 = {m2["A"].tag} | ({m2["Bfr"].tag} if m2["Bfr"] is not None else set())
                    if all(x in self.lg for x in t2):
                        tags |= t2
                self.wait_lg(tags)
                D = ar(m["D"], 16) if m["dacc"] else vr(m["D"], 16)
                C = "0" if m["C"] is None else D
                if m.get("Cinit") is not None:
                    C = vr(m["Cinit"], 16)
                B = ar(m["B"], 4) if m["bacc"] else vr(m["B"], 4)
                skipm = o.nomfma or (o.drop and st["name"][0] in o.drop[1:] and k % 2 == 1 and o.drop[0] == "h") or (o.drop and st["name"][0] in o.drop[1:] and o.drop[0] == "a")
                if not skipm:
                    self(f"v_mfma_f32_32x32x16_bf16 {D}, {ar(m['A'].dst, 4)}, {B}, {C}")
                pump(gi + 1, s)
                while dmaq and (not o.spread or len([1 for x in dmaq if x[1]]) > (ndma0 * (n - 1 - k)) // n):
                    txt, isv, tag = dmaq.pop(0)
                    if not isv:
                        self.emit_item(txt, isv, tag)
                        txt, isv, tag = dmaq.pop(0)
                    self.emit_item(txt, isv, tag)
                    if not o.spread:
                        break
                if fl and k >= fl_start:
                    gaps_left = n - k
                    budget = sum(c for _, c in fl) / gaps_left
                    spent = 0
                    while fl and (spent + fl[0][1] / 2 <= budget or gaps_left == 1 or spent == 0):
                        txt, c = fl.pop(0)
                        self(txt)
                        spent += c
                if st["name"] == "W13" and k >= 5 and k % 2 == 1:
                    dt = (k - 5) // 2
                    for l in self.qcvt_fill(dt):
                        self(l)
                if st["name"] == "O3" and k >= 7 and k % 4 == 3:
                    self.out_tile((k - 7) // 4)
            while dmaq:
                txt, isv, tag = dmaq.pop(0)
                self.emit_item(txt, isv, tag)
            assert not fl
            if st["name"] == "W13":
                self("s_nop 7\ns_nop 3")
                for dt in range(6, 8):
                    for l in self.qcvt_fill(dt):
                        self(l)
                self("s_nop 1")
            if st["name"] == "O3":
                self("s_nop 7\ns_nop 3")
                self.out_tile(13)
        return True

    def out_tile(self, nt):
        base = 16 * (nt & 3)
        pk = 64 + 8 * (nt & 3)
        for i in range(16):
            self(f"v_accvgpr_read_b32 v{base+i}, a{A_OUT + 16*nt + i}")
        for k in range(8):
            self(f"v_cvt_pk_bf16_f32 v{pk+k}, v{base+2*k}, v{base+2*k+1}")
        for beta in range(2):
            g = 2 * nt + beta
            self(f"s_mov_b32 s{S_TOFF}, {g*1024}")
            self.vmem(f"buffer_store_dwordx4 v[{pk+4*beta}:{pk+4*beta+3}], v{V_TS}, s[{SRD_P}:{SRD_P+3}], s{S_TOFF} offen{self.o.pstpol}", "PST")

    def tail_setup(self):
        A = self
        L = V_T2
        A(f"""s_mul_i32 s{S_T}, s{S_H}, {PART_H}
        s_mul_i32 s{S_T2}, s{S_W}, {PART_T}
        s_add_u32 s{S_T}, s{S_T}, s{S_T2}
        v_lshlrev_b32 v{V_TS}, 4, v{L}
        v_add_u32 v{V_TS}, s{S_T}, v{V_TS}
        v_mov_b32 v{V_TT}, 0x40000000
        v_cndmask_b32_e64 v{V_TS}, v{V_TT}, v{V_TS}, s[{S_VAL}:{S_VAL+1}]
        s_lshl_b32 s{S_T}, s{S_W}, 4
        s_add_u32 s{S_T}, s{S_T}, s{S_H}
        s_lshl_b32 s{S_T}, s{S_T}, 7
        v_mov_b32 v{V_TF}, s{S_T}""")

    def tail(self):
        A = self
        L = V_T2
        P = S_PTR
        A("; ---- tail")
        A(f"s_waitcnt vmcnt(0)\ns_barrier")
        self.stamp()
        A(f"s_cmp_lg_u32 s{S_W}, 0\ns_cbranch_scc1 L_polled")
        A(f"""v_mov_b32 v1, s{S_B}
        v_lshlrev_b32 v1, 2, v1
        v_add_u32 v1, 128, v1
        s_mov_b32 s{S_CNT}, 0
        L_nonce:
        global_load_dword v2, v1, s[{P+12}:{P+13}] sc1
        s_add_u32 s{S_CNT}, s{S_CNT}, 1
        s_waitcnt vmcnt(0)
        v_readfirstlane_b32 s{S_NONCE}, v2
        s_cmp_gt_u32 s{S_CNT}, 100000
        s_cbranch_scc1 L_givenup
        s_cmp_eq_u32 s{S_NONCE}, 0
        s_cbranch_scc1 L_nonce
        v_mov_b32 v3, s{S_NONCE}
        v_mov_b32 v4, s{S_H}
        v_lshlrev_b32 v4, 7, v4
        v_lshlrev_b32 v5, 7, v{L}
        s_mov_b64 s[{S_EX}:{S_EX+1}], exec
        s_mov_b64 exec, 1
        buffer_store_dword v3, v4, s[{SRD_F}:{SRD_F+3}], 0 offen sc1
        s_mov_b64 exec, 0xffff
        s_mov_b32 s{S_CNT}, 0
        L_poll:
        buffer_load_dword v6, v5, s[{SRD_F}:{SRD_F+3}], 0 offen sc1
        s_add_u32 s{S_CNT}, s{S_CNT}, 1
        s_waitcnt vmcnt(0)
        v_cmp_ne_u32 vcc, v6, v3
        s_cmp_gt_u32 s{S_CNT}, 100000
        s_cbranch_scc1 L_pdone
        s_cbranch_vccnz L_poll
        L_pdone:
        s_mov_b64 exec, s[{S_EX}:{S_EX+1}]
        L_givenup:
        L_polled:
        s_barrier""")
        self.stamp()
        A(f"""s_and_b32 s{S_T}, s{S_H}, 3
        s_lshr_b32 s{S_T2}, s{S_H}, 2
        s_mul_i32 s{S_T2}, s{S_T2}, 7
        s_add_u32 s{S_T2}, s{S_T2}, s{S_W}
        s_mul_i32 s{S_T3}, s{S_T}, {PART_T}
        s_lshl_b32 s54, s{S_T2}, 10
        s_add_u32 s54, s54, s{S_T3}
        v_lshlrev_b32 v1, 4, v{L}
        v_add_u32 v1, s54, v1
        v_and_b32 v2, 31, v{L}
        s_lshl_b32 s55, s{S_T}, 5
        v_add_u32 v2, s55, v2
        v_cmp_gt_u32 vcc, 112, v2
        v_mov_b32 v3, 0x40000000
        v_cndmask_b32 v1, v3, v1, vcc
        v_mul_u32_u24 v4, 896, v2
        v_lshrrev_b32 v5, 5, v{L}
        v_lshl_add_u32 v4, v5, 4, v4
        s_lshl_b32 s55, s{S_T2}, 5
        v_add_u32 v4, s55, v4
        v_cndmask_b32 v4, v3, v4, vcc
        s_mov_b32 s58, 0x00003f80
        s_mov_b32 s59, 0x3f800000""")
        for un in range(2):
            if un == 1:
                A(f"s_cmp_eq_u32 s{S_W}, 3\ns_cbranch_scc1 L_one_unit")
            for hh in range(16):
                A(f"s_mov_b32 s{S_TOFF}, {hh*PART_H + un*4096}")
                r = 16 + 64 * un + 4 * hh
                A(f"buffer_load_dwordx4 v[{r}:{r+3}], v1, s[{SRD_P}:{SRD_P+3}], s{S_TOFF} offen sc1")
        def reduce(un, nyounger):
            acc = 144 + 8 * un
            for hh in range(16):
                r = 16 + 64 * un + 4 * hh
                A(f"s_waitcnt vmcnt({nyounger + 15 - hh})")
                for k in range(4):
                    if hh == 0:
                        A(f"v_dot2_f32_bf16 v{acc+2*k}, v{r+k}, s58, 0")
                        A(f"v_dot2_f32_bf16 v{acc+2*k+1}, v{r+k}, s59, 0")
                    else:
                        A(f"v_dot2_f32_bf16 v{acc+2*k}, v{r+k}, s58, v{acc+2*k}")
                        A(f"v_dot2_f32_bf16 v{acc+2*k+1}, v{r+k}, s59, v{acc+2*k+1}")
            A("s_nop 2")
            for k in range(4):
                A(f"v_cvt_pk_bf16_f32 v{160+4*un+k}, v{acc+2*k}, v{acc+2*k+1}")
            A(f"buffer_store_dwordx4 v[{160+4*un}:{163+4*un}], v4, s[{SRD_OUT}:{SRD_OUT+3}], 0 offen offset:{128*un}")
        reduce(0, 16)
        reduce(1, 1)
        A("s_branch L_fin\nL_one_unit:")
        reduce(0, 0)
        A("L_fin:")

    def tail2(self):
        A = self
        L = V_T2
        P = S_PTR
        A("; ---- tail")
        A(f"""v_mov_b32 v1, s{S_B}
        v_lshlrev_b32 v1, 2, v1
        v_add_u32 v1, 128, v1
        global_load_dword v2, v1, s[{P+12}:{P+13}] sc1
        s_and_b32 s{S_T}, s{S_H}, 3
        s_lshr_b32 s{S_T2}, s{S_H}, 2
        s_mul_i32 s{S_T2}, s{S_T2}, 7
        s_add_u32 s{S_T2}, s{S_T2}, s{S_W}
        s_mul_i32 s{S_T3}, s{S_T}, {PART_T}
        s_lshl_b32 s{S_NEW}, s{S_T2}, 10
        s_add_u32 s{S_NEW}, s{S_NEW}, s{S_T3}
        v_lshlrev_b32 v8, 4, v{L}
        v_add_u32 v8, s{S_NEW}, v8
        v_and_b32 v9, 31, v{L}
        s_lshl_b32 s{S_NEW}, s{S_T}, 5
        v_add_u32 v9, s{S_NEW}, v9
        v_cmp_gt_u32 vcc, 112, v9
        v_mov_b32 v10, 0x40000000
        v_mul_u32_u24 v11, 896, v9
        v_cndmask_b32 v8, v10, v8, vcc
        v_lshrrev_b32 v12, 5, v{L}
        v_lshl_add_u32 v11, v12, 4, v11
        s_lshl_b32 s{S_NEW}, s{S_T2}, 5
        v_add_u32 v11, s{S_NEW}, v11
        v_cndmask_b32 v11, v10, v11, vcc
        s_lshl_b32 s{S_NEW}, s{S_T}, 4
        v_add_u32 v5, s{S_NEW}, v{L}
        v_lshlrev_b32 v5, 7, v5
        v_cmp_gt_u32 vcc, 16, v{L}
        s_mov_b32 s58, 0x00003f80
        s_mov_b32 s59, 0x3f800000
        v_cndmask_b32 v5, v10, v5, vcc
        s_cmp_eq_u32 s{S_W}, 3
        s_cselect_b32 s{S_NEW}, 0x40000000, 4096
        v_add_u32 v9, s{S_NEW}, v8
        s_cselect_b32 s{S_NEW}, 0x40000000, 128
        v_add_u32 v12, s{S_NEW}, v11""")
        for i in range(16):
            A(f"v_mov_b32 v{144+i}, 0")
        A("s_waitcnt vmcnt(0)")
        self.stamp()
        A(f"""v_readfirstlane_b32 s{S_NONCE}, v2
        s_mov_b32 s{S_CNT}, 0
        L_nonce:
        s_cmp_lg_u32 s{S_NONCE}, 0
        s_cbranch_scc1 L_havenonce
        global_load_dword v2, v1, s[{P+12}:{P+13}] sc1
        s_add_u32 s{S_CNT}, s{S_CNT}, 1
        s_waitcnt vmcnt(0)
        v_readfirstlane_b32 s{S_NONCE}, v2
        s_cmp_lt_u32 s{S_CNT}, 100000
        s_cbranch_scc1 L_nonce
        L_havenonce:
        v_mov_b32 v3, s{S_NONCE}
        s_mov_b64 s[{S_EX}:{S_EX+1}], exec
        s_mov_b64 exec, 1
        buffer_store_dword v3, v{V_TF}, s[{SRD_F}:{SRD_F+3}], 0 offen sc1
        s_mov_b64 exec, s[{S_EX}:{S_EX+1}]
        s_mov_b32 s{S_DONE}, 0
        s_mov_b32 s{S_PEND}, 0
        s_mov_b32 s{S_CNT}, 0
        L_loop:
        s_cmp_eq_u32 s{S_DONE}, 0xffff
        s_cbranch_scc1 L_nopoll
        buffer_load_dword v6, v5, s[{SRD_F}:{SRD_F+3}], 0 offen sc1
        L_nopoll:
        s_waitcnt vmcnt(0)""")
        for hh in range(16):
            A(f"s_bitcmp1_b32 s{S_PEND}, {hh}\ns_cbranch_scc0 L_sa{hh}")
            for un in range(2):
                acc, r = 144 + 8 * un, 16 + 64 * un + 4 * hh
                for k in range(4):
                    A(f"v_dot2_f32_bf16 v{acc+2*k}, v{r+k}, s58, v{acc+2*k}")
                    A(f"v_dot2_f32_bf16 v{acc+2*k+1}, v{r+k}, s59, v{acc+2*k+1}")
            A(f"L_sa{hh}:")
        A(f"""s_cmp_eq_u32 s{S_DONE}, 0xffff
        s_cbranch_scc1 L_alldone
        v_cmp_eq_u32 vcc, v6, v3
        s_add_u32 s{S_CNT}, s{S_CNT}, 1
        s_cmp_lt_u32 s{S_CNT}, 100000
        s_cselect_b32 s{S_T}, 0, 0xffff
        s_or_b32 s{S_NEW}, vcc_lo, s{S_T}
        s_and_b32 s{S_NEW}, s{S_NEW}, 0xffff
        s_andn2_b32 s{S_NEW}, s{S_NEW}, s{S_DONE}""")
        for hh in range(16):
            A(f"s_bitcmp1_b32 s{S_NEW}, {hh}\ns_cbranch_scc0 L_sl{hh}")
            A(f"s_mov_b32 s{S_TOFF}, {hh*PART_H}")
            for un in range(2):
                r = 16 + 64 * un + 4 * hh
                A(f"buffer_load_dwordx4 v[{r}:{r+3}], v{8+un}, s[{SRD_P}:{SRD_P+3}], s{S_TOFF} offen{self.o.pldpol}")
            A(f"L_sl{hh}:")
        A(f"""s_or_b32 s{S_DONE}, s{S_DONE}, s{S_NEW}
        s_mov_b32 s{S_PEND}, s{S_NEW}
        s_branch L_loop
        L_alldone:
        s_nop 2""")
        for un in range(2):
            acc = 144 + 8 * un
            for k in range(4):
                A(f"v_cvt_pk_bf16_f32 v{160+4*un+k}, v{acc+2*k}, v{acc+2*k+1}")
            A(f"buffer_store_dwordx4 v[{160+4*un}:{163+4*un}], v{11+un}, s[{SRD_OUT}:{SRD_OUT+3}], 0 offen")

    def dump_regs(self, kind, start, n):
        A = self
        P = S_PTR
        A("s_waitcnt vmcnt(0) lgkmcnt(0)\ns_nop 7\ns_nop 7")
        A(f"""s_lshl_b32 s{S_T}, s2, 2
        s_add_u32 s{S_T}, s{S_T}, s{S_W}
        s_mul_i32 s{S_T}, s{S_T}, {n*256}
        s_add_u32 s{S_T}, s{S_T}, {WS_DBG}
        s_add_u32 s60, s{P+14}, s{S_T}
        s_addc_u32 s61, s{P+15}, 0
        s_mov_b32 s62, {n*256}
        s_mov_b32 s63, 0x20000
        v_lshlrev_b32 v{V_T0}, 2, v{V_T2}""")
        for i in range(n):
            A(f"s_mov_b32 s{S_TOFF}, {i*256}")
            if kind == "a":
                A(f"buffer_store_dword a{start+i}, v{V_T0}, s[60:63], s{S_TOFF} offen")
            else:
                A(f"buffer_store_dword v{start+i}, v{V_T0}, s[60:63], s{S_TOFF} offen")
        A("s_waitcnt vmcnt(0)")

    def write_stamps(self):
        if not self.o.stamps:
            return
        A = self
        P = S_PTR
        n = self.nstamp
        R = self.STAMP_REGS
        A(f"""s_waitcnt lgkmcnt(0)
        s_mul_i32 s{S_T}, s2, {8*self.o.nstamps}
        s_add_u32 s60, s{P+14}, s{S_T}
        s_addc_u32 s61, s{P+15}, 0
        s_add_u32 s60, s60, {WS_STAMP}
        s_addc_u32 s61, s61, 0
        s_cmp_lg_u32 s{S_W}, 0
        s_cbranch_scc1 L_nostamp
        s_mov_b64 exec, 1
        v_mov_b32 v1, 0""")
        assert n <= self.o.nstamps, n
        if self.o.dbgstamps:
            k0, k1 = R[0], R[n - 1]
            A(f"v_mov_b32 v2, s{k1}\nglobal_atomic_umax v1, v2, s[{P+12}:{P+13}]")
            A(f"s_not_b32 s{S_T}, s{k0}\nv_mov_b32 v2, s{S_T}\nglobal_atomic_umax v1, v2, s[{P+12}:{P+13}] offset:4")
            A(f"s_cmp_lg_u32 s2, {self.o.dbgwg}\ns_cbranch_scc1 L_nostamp")
            for i in range(1, n):
                A(f"s_sub_u32 s{S_T}, s{R[i]}, s{k0}\nv_mov_b32 v2, s{S_T}\nglobal_store_dword v1, v2, s[{P+12}:{P+13}] offset:{4*(i+1)}\ns_nop 1")
            A("s_waitcnt vmcnt(0)\nL_nostamp:")
            return
        A("v_mov_b32 v3, 0")
        for i in range(self.o.nstamps):
            k = R[min(i, n - 1)]
            A(f"v_mov_b32 v2, s{k}\nglobal_store_dwordx2 v1, v[2:3], s[60:61] offset:{8*i}\ns_nop 1")
        A("s_waitcnt vmcnt(0)\nL_nostamp:")

    def generate(self):
        o = self.o
        self.build()
        self.plan_dma()
        self.prologue()
        if "P0" in o.stampat: self.stamp()
        for T in self.initA:
            self.emit_dma(T)
        if "P1" in o.stampat: self.stamp()
        if o.touch:
            self.touch_xw()
        self.prologue2()
        if o.tlb:
            self.tlb_warm()
        for T in self.initB:
            self.emit_dma(T)
        if "P2" in o.stampat: self.stamp()
        self(f"s_mov_b32 s{S_T3}, 0x47800000")
        done = self.emit_main_wrap()
        if done:
            if o.oldtail:
                self.tail()
            else:
                self.tail2()
            if o.stamps:
                self("s_waitcnt vmcnt(0)")
                self.stamp()
        self.write_stamps()
        self("L_end:\ns_endpgm")
        self.rare_code()
        self("L_code_end:")
        return self.finish()

    def emit_main_wrap(self):
        o = self.o
        steps = self.steps
        for st in steps:
            if st["name"] == "K1":
                st["hook"] = True
        done = self._emit_with_hooks()
        if not done:
            kind, start, n = o.dump
            self.dump_regs(kind, start, n)
        return done

    def _emit_with_hooks(self):
        done = self.emit_main()
        if done:
            out = []
            save = self.ins
            self.ins = []
            self.tail_setup()
            setup = self.ins
            self.ins = save
            for l in self.ins:
                out.append(l)
                if l.startswith("; ---- step") and " V1_0 " in l:
                    out += setup
            self.ins = out
        return done

    def finish(self):
        ins = fix_hazards(self.ins, self.o.verbose)
        hdr = []
        hdr.append("; @launch grid=(256,1,1) block=(256,1,1) lds=163840")
        hdr.append('.amdgcn_target "amdgcn-amd-amdhsa--gfx950"')
        hdr.append(".text")
        hdr.append(f".globl {NAME}\n.p2align 8\n.type {NAME},@function\n{NAME}:")
        body = "\n".join(ins)
        nbytes = estimate_size(ins)
        ntouch = min(64, -(-(-(-nbytes // 128)) // 32))
        body = body.replace("CODE_TOUCH_N", str(ntouch))
        tail = f""".section .rodata,"a"
.p2align 6
.amdhsa_kernel {NAME}
  .amdhsa_next_free_vgpr 512
  .amdhsa_next_free_sgpr 102
  .amdhsa_accum_offset 256
  .amdhsa_group_segment_fixed_size 0
  .amdhsa_kernarg_size 64
  .amdhsa_user_sgpr_count 2
  .amdhsa_user_sgpr_kernarg_segment_ptr 1
  .amdhsa_system_sgpr_workgroup_id_x 1
.end_amdhsa_kernel"""
        if self.o.verbose:
            print("code bytes ~", nbytes, "touch lanes", ntouch, file=sys.stderr)
        return "\n".join(hdr) + "\n" + body + "\n" + tail + "\n"


REG_RE = re.compile(r"(-?)\b([vas])(?:\[(\d+):(\d+)\]|(\d+))(?![\w\[])")


def regs_of(op):
    out = []
    for m in REG_RE.finditer(op):
        k = m.group(2)
        if m.group(3) is not None:
            out += [(k, i) for i in range(int(m.group(3)), int(m.group(4)) + 1)]
        else:
            out.append((k, int(m.group(5))))
    return out


TRANS = ("v_exp_f32", "v_log_f32", "v_rcp_f32", "v_rsq_f32", "v_sqrt_f32")


def parse(l):
    l0 = l.split(";")[0].strip()
    if not l0 or l0.endswith(":") or l0.startswith("."):
        return None
    parts = l0.split(None, 1)
    mn = parts[0]
    ops = [x.strip() for x in parts[1].split(",")] if len(parts) > 1 else []
    d = dict(mn=mn, w=set(), r=set(), c=set(), kind="other")
    if mn.startswith("v_mfma"):
        d["kind"] = "mfma"
        d["w"] = set(regs_of(ops[0]))
        d["ab"] = set(regs_of(ops[1])) | set(regs_of(ops[2]))
        d["c"] = set(regs_of(ops[3]))
        d["r"] = d["ab"] | d["c"]
    elif mn.startswith("v_"):
        d["kind"] = "valu"
        if mn.startswith("v_cmp"):
            d["w"] = set(regs_of(ops[0])) | ({("s", "vcc")} if ops[0] == "vcc" else set())
            d["r"] = set(x for o in ops[1:] for x in regs_of(o))
        elif mn.startswith("v_permlane32_swap") or mn.startswith("v_permlane16_swap"):
            d["w"] = set(regs_of(ops[0])) | set(regs_of(ops[1]))
            d["r"] = set(d["w"])
            d["perm"] = True
        elif mn.startswith("v_readfirstlane") or mn.startswith("v_readlane"):
            d["w"] = set(regs_of(ops[0]))
            d["r"] = set(x for o in ops[1:] for x in regs_of(o))
            d["rfl"] = True
        else:
            d["w"] = set(regs_of(ops[0]))
            d["r"] = set(x for o in ops[1:] for x in regs_of(o))
            if "vcc" in ops[1:]:
                d["r"].add(("s", "vcc"))
            if mn.startswith("v_fmac") or mn.startswith("v_dot2c"):
                d["r"] |= d["w"]
        d["trans"] = mn.split("_e")[0] in TRANS or mn in TRANS
    elif mn.startswith("ds_read"):
        d["kind"] = "ds"
        d["w"] = set(regs_of(ops[0]))
        d["r"] = set(regs_of(ops[1].split()[0]))
    elif mn.startswith("ds_write"):
        d["kind"] = "ds"
        d["r"] = set(x for o in ops for x in regs_of(o.split()[0]))
    elif mn.startswith("buffer_") or mn.startswith("global_"):
        d["kind"] = "vmem"
        allr = [regs_of(o.split()[0]) if o else [] for o in ops]
        if "store" in mn or "atomic" in mn:
            d["r"] = set(x for a in allr for x in a)
            d["store"] = True
            big = "x4" in mn or "x3" in mn
            if big:
                src = allr[0] if mn.startswith("buffer_") else allr[1]
                d["stdata"] = set(src)
        elif " lds" in l0:
            d["r"] = set(x for a in allr for x in a)
            d["dma"] = True
        else:
            d["w"] = set(allr[0])
            d["r"] = set(x for a in allr[1:] for x in a)
    elif mn.startswith("s_"):
        d["kind"] = "salu"
        if mn == "s_nop":
            d["nop"] = int(ops[0]) + 1
        if ops and (ops[0] == "m0"):
            d["m0w"] = True
        if ops and not mn.startswith("s_cmp") and not mn.startswith("s_cbranch") and not mn.startswith("s_waitcnt"):
            d["w"] = set(regs_of(ops[0]))
        d["r"] = set(x for o in ops[1:] for x in regs_of(o))
    return d


def fix_hazards(ins, verbose=False):
    out = []
    last = {}
    pos = 0
    inserted = 0
    mf_w, mf_c, valu_w, trans_w, valu_sw, st_data = {}, {}, {}, {}, {}, {}
    m0w = -100
    for l in ins:
        d = parse(l)
        if d is None:
            out.append(l)
            continue
        need = 0

        def req(table, regs, n):
            nonlocal need
            for r in regs:
                if r in table:
                    need = max(need, table[r] + n + 1 - pos)
        k = d["kind"]
        if k == "mfma":
            req(valu_w, d["r"], 2)
            req(mf_w, d["ab"], 12)
            for r in d["c"]:
                if r in mf_w and d["c"] != mf_w_set.get(r, None):
                    need = max(need, mf_w[r] + 10 + 1 - pos)
        elif k == "valu":
            req(mf_w, d["r"] | d["w"], 12)
            req(mf_c, d["w"], 7)
            if not d.get("trans"):
                req(trans_w, d["r"], 1)
            else:
                req(trans_w, d["r"], 1)
            if d.get("perm"):
                req(valu_w, d["r"], 2)
            if d.get("rfl"):
                req(valu_w, d["r"], 1)
            req(valu_sw, set(r for r in d["r"] if r[0] == "s"), 2)
            req(st_data, d["w"], 2)
        elif k in ("ds", "vmem"):
            req(mf_w, d["r"] | d["w"], 12)
            req(valu_sw, set(r for r in d["r"] if r[0] == "s"), 5)
            req(trans_w, d["r"], 1)
            if d.get("dma"):
                need = max(need, m0w + 1 + 1 - pos)
        if need > 0:
            n = need
            while n > 0:
                c = min(n, 8)
                out.append(f"s_nop {c-1}")
                pos += c
                n -= c
            inserted += need
            if verbose:
                print(f"  hazard nop {need} before: {l}", file=sys.stderr)
        out.append(l)
        if k == "mfma":
            for r in d["w"]:
                mf_w[r] = pos
                mf_w_set[r] = d["w"]
            for r in d["c"]:
                mf_c[r] = pos
        elif k == "valu":
            for r in d["w"]:
                if r[0] == "s":
                    valu_sw[r] = pos
                else:
                    valu_w[r] = pos
                    if d.get("trans"):
                        trans_w[r] = pos
                    else:
                        trans_w.pop(r, None)
                    mf_w.pop(r, None)
        elif k == "vmem" and "stdata" in d:
            for r in d["stdata"]:
                st_data[r] = pos
        elif k == "salu":
            if d.get("m0w"):
                m0w = pos
            for r in d["w"]:
                valu_sw.pop(r, None)
        pos += d.get("nop", 1)
    if verbose:
        print("hazard nops inserted:", inserted, file=sys.stderr)
    return out


mf_w_set = {}


def estimate_size(ins):
    n = 0
    for l in ins:
        d = parse(l)
        if d is None:
            continue
        n += 8
    return n


def main():
    ap = argparse.ArgumentParser()
    ap.add_argument("-o", default="k.s")
    ap.add_argument("--pstpol", default="_sc1")
    ap.add_argument("--pldpol", default="_sc1")
    ap.add_argument("--opol", default="")
    ap.add_argument("--kpol", default="")
    ap.add_argument("--vpol", default="")
    ap.add_argument("--wpol", default="")
    ap.add_argument("--pf", type=int, default=6)
    ap.add_argument("--lak", type=int, default=9)
    ap.add_argument("--lav", type=int, default=9)
    ap.add_argument("--lao", type=int, default=9)
    ap.add_argument("--lao3", type=int, default=1)
    ap.add_argument("--vorder", default="alt")
    ap.add_argument("--kafter", type=int, default=0)
    ap.add_argument("--wsteps", default="")
    ap.add_argument("--xsteps", default="")
    ap.add_argument("--rsteps", default="")
    ap.add_argument("--kwstep", type=int, default=12)
    ap.add_argument("--regfirst", action="store_true")
    ap.add_argument("--lw", type=int, default=3)
    ap.add_argument("--lx", type=int, default=3)
    ap.add_argument("--ksteps", default="1,4,7,10")
    ap.add_argument("--touch", action="store_true")
    ap.add_argument("--notlb", dest="tlb", action="store_false")
    ap.add_argument("--norotate", dest="rotate", action="store_false")
    ap.add_argument("--nospread", dest="spread", action="store_false")
    ap.add_argument("--wotouch", default="")
    ap.add_argument("--dmarate", type=int, default=2)
    ap.add_argument("--stamps", action="store_true")
    ap.add_argument("--nstamps", type=int, default=10)
    ap.add_argument("--stampat", default="K0,V0_0,O3")
    ap.add_argument("--dbgstamps", action="store_true")
    ap.add_argument("--dbgwg", type=int, default=0)
    ap.add_argument("--nozeropad", dest="zeropad", action="store_false")
    ap.add_argument("--oldtail", action="store_true")
    ap.add_argument("--drop", default="")
    ap.add_argument("--nosets", dest="sets", action="store_false")
    ap.add_argument("--nomergewait", dest="mergewait", action="store_false")
    ap.add_argument("--nodma", action="store_true")
    ap.add_argument("--nomfma", action="store_true")
    ap.add_argument("--xccdump", action="store_true")
    ap.add_argument("--norare", action="store_true")
    ap.add_argument("--cyc", action="store_true")
    ap.add_argument("--both", action="store_true")
    ap.add_argument("--stamprange", default="")
    ap.add_argument("--skip", default="")
    ap.add_argument("--stop", default="")
    ap.add_argument("--dump", default="v,0,128")
    ap.add_argument("--nocodetouch", dest="codetouch", action="store_false")
    ap.add_argument("-v", dest="verbose", action="store_true")
    o = ap.parse_args()
    o.kpol = o.kpol.replace("_", " ")
    o.pstpol = o.pstpol.replace("_", " ")
    o.pldpol = o.pldpol.replace("_", " ")
    o.opol = o.opol.replace("_", " ")
    o.vpol = o.vpol.replace("_", " ")
    o.wpol = o.wpol.replace("_", " ")
    o.stampat = o.stampat.split(",")
    if o.stamprange:
        a, b = [int(x) for x in o.stamprange.split(":")]
        o.stampidx = set(range(a, b))
    else:
        o.stampidx = set()
    k, a, b = o.dump.split(",")
    o.dump = (k, int(a), int(b))
    g = Gen(o)
    open(o.o, "w").write(g.generate())


if __name__ == "__main__":
    main()
```
